```python
import torch

def _softmax(x, axis=-1):
    return torch.softmax(x, dim=axis)
def _gelu(x):
    return torch.nn.functional.gelu(x, approximate="tanh")
def _silu(x):
    return torch.nn.functional.silu(x)
def _sigmoid(x):
    return torch.sigmoid(x)
def _layernorm(x, axis=-1, eps=1e-5):
    m = x.mean(dim=axis, keepdim=True)
    v = x.var(dim=axis, keepdim=True, unbiased=False)
    return (x - m) / torch.sqrt(v + eps)
def _scatter_add(tgt, idx, src, axis=0):
    return tgt.clone().index_add_(axis, idx, src)
def _segment_sum(src, seg, n):
    out = torch.zeros((n,) + src.shape[1:], dtype=src.dtype)
    return out.index_add_(0, seg, src)
def _pad(x, pw):
    flat = tuple(v for pair in reversed(pw) for v in pair)
    return torch.nn.functional.pad(x, flat)

kernel_name = 'concat_heads__spectral_fnet__grouped_kv_mqa__prompt'

def setup_inputs():

    _w = (lambda a: (lambda t: t.to(torch.bfloat16) if t.is_floating_point() else t)(torch.as_tensor(a)))
    def _A_setup():
        B, S, D = 1, 2048, 640
        ns = torch.arange(S)[:, None] * torch.arange(S)[None, :]
        nd = torch.arange(D)[:, None] * torch.arange(D)[None, :]
        Ws_re = torch.cos(-2.0 * torch.pi * ns / S).to(float)
        Ws_im = torch.sin(-2.0 * torch.pi * ns / S).to(float)
        Wd_re = torch.cos(-2.0 * torch.pi * nd / D).to(float)
        Wd_im = torch.sin(-2.0 * torch.pi * nd / D).to(float)
        return {
            "x": _w((lambda *s: torch.randn(*s, dtype=torch.bfloat16) * 0.05)(B, S, D)),
            "dft_seq_re": _w(Ws_re),
            "dft_seq_im": _w(Ws_im),
            "dft_hid_re": _w(Wd_re),
            "dft_hid_im": _w(Wd_im),
        }
    _A_in = _A_setup()

    def _B_setup():
        B, S, D, H = 1, 2048, 640, 32
        Dh = D // H
        return {
            "x": _w((lambda *s: torch.randn(*s, dtype=torch.bfloat16) * 0.05)(B, S, D)),
            "wq": _w((lambda *s: torch.randn(*s, dtype=torch.bfloat16) * 3.2)(D, H * Dh)),
            "wk": _w((lambda *s: torch.randn(*s, dtype=torch.bfloat16) * 3.2)(D, Dh)),
            "wv": _w((lambda *s: torch.randn(*s, dtype=torch.bfloat16) * 0.4)(D, Dh)),
            "wo": _w((lambda *s: torch.randn(*s, dtype=torch.bfloat16) * 0.4)(H * Dh, D)),
        }
    _B_in = _B_setup()

    return {
        "A_x": _A_in["x"],
        "A_dft_seq_re": _A_in["dft_seq_re"],
        "A_dft_seq_im": _A_in["dft_seq_im"],
        "A_dft_hid_re": _A_in["dft_hid_re"],
        "A_dft_hid_im": _A_in["dft_hid_im"],
        "B_x": _B_in["x"],
        "B_wq": _B_in["wq"],
        "B_wk": _B_in["wk"],
        "B_wv": _B_in["wv"],
        "B_wo": _B_in["wo"],
    }

def reference(A_x, A_dft_seq_re, A_dft_seq_im, A_dft_hid_re, A_dft_hid_im, B_x, B_wq, B_wk, B_wv, B_wo):
    def _A_ref(x, dft_seq_re, dft_seq_im, dft_hid_re, dft_hid_im):
        a = torch.einsum("bsd,ed->bse", x, dft_hid_re)
        b = torch.einsum("bsd,ed->bse", x, dft_hid_im)
        y = torch.einsum("ts,bse->bte", dft_seq_re, a) - torch.einsum("ts,bse->bte", dft_seq_im, b)
        return y

    def _B_ref(x, wq, wk, wv, wo):
        B, S, D = x.shape
        H = 32
        Dh = D // H
        q = (lambda x, *d: x.permute(*d))((x @ wq).reshape(B, S, H, Dh), 0, 2, 1, 3)
        k = x @ wk
        v = x @ wv
        scores = torch.einsum("bhqd,bkd->bhqk", q, k) * (Dh ** -0.5)
        p = _softmax(scores, axis=-1)
        o = torch.einsum("bhqk,bkd->bhqd", p, v)
        return (lambda x, *d: x.permute(*d))(o, 0, 2, 1, 3).reshape(B, S, H * Dh) @ wo

    a = _A_ref(A_x, A_dft_seq_re, A_dft_seq_im, A_dft_hid_re, A_dft_hid_im)
    b = _B_ref(B_x, B_wq, B_wk, B_wv, B_wo)
    return torch.concatenate([a, b], axis=-1)
```

```python
class Asm:
    def __init__(self):
        self.lines = []
    def __call__(self, s=''):
        for l in s.split('\n'):
            l = l.rstrip()
            if not l: continue
            if l.lstrip().endswith(':') or l.lstrip().startswith('.'):
                self.lines.append(l.strip())
            else:
                self.lines.append('  ' + l.strip())
    def text(self):
        return '\n'.join(self.lines) + '\n'

def v(a, n=1):
    return f'v{a}' if n == 1 else f'v[{a}:{a+n-1}]'
def s(a, n=1):
    return f's{a}' if n == 1 else f's[{a}:{a+n-1}]'

class Regs:
    def __init__(self, start=0, limit=256):
        self.p = start; self.limit = limit; self.hi = start
    def get(self, n=1, align=None):
        if align is None: align = 2 if n >= 2 else 1
        self.p = (self.p + align - 1) // align * align
        r = self.p; self.p += n
        assert self.p <= self.limit, f'out of registers ({self.p})'
        self.hi = max(self.hi, self.p)
        return r

def kernel_head(name):
    return f'''.globl {name}
.p2align 8
.type {name},@function
{name}:
'''
def kernel_desc(name, nv, ns=102):
    acc = (nv + 3) // 4 * 4
    return f'''.p2align 6
.amdhsa_kernel {name}
  .amdhsa_next_free_vgpr {nv}
  .amdhsa_next_free_sgpr {ns}
  .amdhsa_accum_offset {acc}
  .amdhsa_group_segment_fixed_size 0
  .amdhsa_kernarg_size 104
  .amdhsa_user_sgpr_count 2
  .amdhsa_user_sgpr_kernarg_segment_ptr 1
  .amdhsa_system_sgpr_workgroup_id_x 1
.end_amdhsa_kernel
'''
def srd(a, d, base, nbytes, off=0):
    if off:
        a(f's_add_u32 {s(d)}, {s(base)}, {hex(off)}')
        a(f's_addc_u32 {s(d+1)}, {s(base+1)}, 0')
    else:
        a(f's_mov_b32 {s(d)}, {s(base)}')
        a(f's_mov_b32 {s(d+1)}, {s(base+1)}')
    a(f's_mov_b32 {s(d+2)}, {hex(nbytes)}')
    a(f's_mov_b32 {s(d+3)}, 0x20000')
```

```python
import numpy as np
def bf16(x):
    u = np.ascontiguousarray(x, np.float32).view(np.uint32)
    return ((u + 0x7FFF + ((u >> 16) & 1)) >> 16).astype(np.uint16)
def f32(u):
    return (u.astype(np.uint32) << 16).view(np.float32)
DP = np.array([[ (i//4)*8 + 4*h + i%4 for i in range(8)] for h in range(2)])
def kv_image(K, V):
    img = np.zeros((16, 5120), np.uint16)
    for u in range(16):
        for tt in range(4):
            t = 4*u+tt
            k = K[32*t:32*t+32]
            img[u, tt*512:(tt+1)*512] = np.concatenate([k[:, DP[0]], k[:, DP[1]]]).reshape(-1)
            kb = img[u, 2048:2560].reshape(2, 32, 2, 4)
            kb[tt%2, :, tt//2, :] = k[:, 16:20]
            for f in range(2):
                vv = V[32*t+16*f:32*t+16*f+16].reshape(2, 8, 20).transpose(0, 2, 1)
                img[u, 2560+(tt*2+f)*320:2560+(tt*2+f+1)*320] = vv.reshape(-1)
    return img
def kv_decode(img):
    img = img.reshape(16, 5120)
    K = np.zeros((2048,20), np.uint16); V = np.zeros((2048,20), np.uint16)
    for u in range(16):
        for tt in range(4):
            t = 4*u+tt
            ka = img[u, tt*512:(tt+1)*512].reshape(2, 32, 8)
            for h in range(2): K[32*t:32*t+32][:, DP[h]] = ka[h]
            K[32*t:32*t+32, 16:20] = img[u, 2048:2560].reshape(2, 32, 2, 4)[tt%2, :, tt//2, :]
            for f in range(2):
                vv = img[u, 2560+(tt*2+f)*320:2560+(tt*2+f+1)*320].reshape(2, 20, 8).transpose(0, 2, 1)
                V[32*t+16*f:32*t+16*f+16] = vv.reshape(16, 20)
    return K, V
def q_image(Q):
    q = Q.reshape(64, 32, 32, 20).transpose(0, 2, 1, 3)
    img = np.zeros((64, 32, 640), np.uint16)
    img[:, :, 0:256] = q[:, :, :, DP[0]].reshape(64, 32, 256)
    img[:, :, 256:512] = q[:, :, :, DP[1]].reshape(64, 32, 256)
    img[:, :, 512:640] = q[:, :, :, 16:20].reshape(64, 32, 128)
    return img
def q_decode(img):
    img = img.reshape(64, 32, 640)
    q = np.zeros((64, 32, 32, 20), np.uint16)
    q[:, :, :, DP[0]] = img[:, :, 0:256].reshape(64, 32, 32, 8)
    q[:, :, :, DP[1]] = img[:, :, 256:512].reshape(64, 32, 32, 8)
    q[:, :, :, 16:20] = img[:, :, 512:640].reshape(64, 32, 32, 4)
    return q.transpose(0, 2, 1, 3).reshape(2048, 640)
def o_kmap():
    m = np.zeros((40, 2, 8), int)
    for hg in range(8):
        for hh in range(4):
            m[hg*5+hh] = (4*hg+hh)*20 + DP
        for h in range(2):
            for i in range(8):
                m[hg*5+4, h, i] = (4*hg + 2*h + i//4)*20 + 16 + i%4
    return m
def o_decode(img):
    img = img.reshape(64, 40, 2, 32, 8)
    O = np.zeros((64, 32, 640), np.uint16); m = o_kmap()
    for ks in range(40):
        for h in range(2):
            O[:, :, m[ks, h]] = img[:, ks, h]
    return O.reshape(2048, 640)
def o_image(O):
    O = O.reshape(64, 32, 640); m = o_kmap()
    img = np.zeros((64, 40, 2, 32, 8), np.uint16)
    for ks in range(40):
        for h in range(2):
            img[:, ks, h] = O[:, :, m[ks, h]]
    return img
```

```python
from asmlib import *
from layout import *
import struct
def fhex(x): return hex(struct.unpack('<I', struct.pack('<f', x))[0])

SLOT = 30720; XOFF = 0; WOFF = 16384; KVOFF = 28672
OOB = 0x40000000

def gen_k1(name='prep_kernel', diag=False):
    a = Asm()
    sW=3; sJ=4; sRB=5; sCG=6; sRole=7
    sX=8; sWt=12; sKVw=16; sWS=20; sOut=24; sOut2=28; sD=32
    sM0=36; sXo=37; sWo=38; sKo=39; sT0=40; sT1=41; sT2=42; sT3=43; sLo=44; sP=46
    sTs=70
    def stamp(i):
        if diag: a(f"{'s_memrealtime' if diag == 'rt' else 's_memtime'} {s(sTs+2*i,2)}")
    def diag_out():
        if not diag: return
        a('s_waitcnt vmcnt(0)')
        stamp(4)
        srd(a, sD, sWS, 0x10000, WS_DIAG + (0x10000*0 if diag == 'rt' else 0))
        a(f'''s_waitcnt lgkmcnt(0)
        s_lshl_b32 {s(sT0)}, s2, 3
        s_add_u32 {s(sT0)}, {s(sT0)}, {s(sW)}
        s_lshl_b32 {s(sT0)}, {s(sT0)}, 5
        s_mov_b64 exec, 1
        v_mov_b32 v1, {s(sT0)}''')
        for i in range(5): a(f'v_mov_b32 {v(4+i)}, {s(sTs+2*i)}')
        a(f'''buffer_store_dwordx4 v[4:7], v1, {s(sD,4)}, 0 offen
        buffer_store_dwordx4 v[8:11], v1, {s(sD,4)}, 0 offen offset:16''')
    L = lambda x: f'L_{name}_{x}'
    vLane=1; vT0=2; vT1=3; vT2=4; vT3=5
    a(kernel_head(name))
    a(f'''s_cmp_ge_u32 s2, 256
    s_cbranch_scc1 {L('end')}''')
    stamp(0)
    a(f'''s_load_dwordx2 s[46:47], s[0:1], 0        ; A_x
    s_load_dwordx4 s[48:51], s[0:1], 24
    s_load_dwordx8 s[52:59], s[0:1], 40
    s_load_dwordx2 {s(sWS,2)}, s[0:1], 96
    v_lshrrev_b32 {v(vT0)}, 6, v0
    v_and_b32 {v(vLane)}, 63, v0
    v_readfirstlane_b32 {s(sW)}, {v(vT0)}
    s_and_b32 {s(sJ)}, s2, 7
    s_lshr_b32 {s(sT0)}, s2, 3
    s_and_b32 {s(sRole)}, {s(sT0)}, 1
    s_lshr_b32 {s(sT0)}, {s(sT0)}, 1
    s_and_b32 {s(sCG)}, {s(sT0)}, 7
    s_lshr_b32 {s(sRB)}, {s(sT0)}, 3
    s_mov_b32 {s(sLo)}, -1
    s_mov_b32 {s(sLo+1)}, 0
    s_cmp_ge_u32 {s(sW)}, 4
    s_cbranch_scc0 {L('compute')}''')
    vXa = [8, 9]; vWa = [10, 11, 12]; vKa = 13
    sLW = sT3
    a(f'''s_sub_u32 {s(sLW)}, {s(sW)}, 4
    v_lshrrev_b32 {v(vT0)}, 3, {v(vLane)}
    v_and_b32 {v(vT1)}, 7, {v(vLane)}              ; 16B slot
    v_lshrrev_b32 {v(vT2)}, 4, {v(vLane)}
    v_xor_b32 {v(vT1)}, {v(vT1)}, {v(vT2)}
    v_xor_b32 {v(vT2)}, 4, {v(vT1)}
    v_lshlrev_b32 {v(vT1)}, 4, {v(vT1)}
    v_lshlrev_b32 {v(vT2)}, 4, {v(vT2)}
    s_cmp_eq_u32 {s(sRole)}, 0
    s_cbranch_scc0 {L('ldF')}''')
    def loader(role):
        xs = 1280 if role == 'Q' else 81920
        n = 8 if role == 'Q' else 7
        a(f'''s_mov_b32 {s(sT0)}, {xs}
        v_mad_u32_u24 {v(vXa[0])}, {v(vT0)}, {s(sT0)}, {v(vT1)}
        v_mad_u32_u24 {v(vXa[1])}, {v(vT0)}, {s(sT0)}, {v(vT2)}''')
        if role == 'Q':
            a(f'''s_lshl_b32 {s(sT0)}, {s(sJ)}, 3
            s_lshl_b32 {s(sT1)}, {s(sRB)}, 2
            s_add_u32 {s(sT0)}, {s(sT0)}, {s(sT1)}
            s_add_u32 {s(sT0)}, {s(sT0)}, {s(sLW)}
            s_mul_i32 {s(sXo)}, {s(sT0)}, {32*1280}
            s_mul_i32 {s(sWo)}, {s(sCG)}, 160
            s_mul_i32 {s(sT0)}, {s(sLW)}, 192
            s_mov_b32 {s(sT1)}, 5462''')
            for q in range(3):
                a(f'''v_add_u32 {v(vT0)}, {s(sT0)}, {v(vLane)}
                v_add_u32 {v(vT0)}, {64*q}, {v(vT0)}            ; piece p
                v_mul_u32_u24 {v(vT1)}, {s(sT1)}, {v(vT0)}
                v_lshrrev_b32 {v(vT1)}, 16, {v(vT1)}            ; k row = p/12
                v_mul_u32_u24 {v(vT2)}, 12, {v(vT1)}
                v_sub_u32 {v(vT0)}, {v(vT0)}, {v(vT2)}          ; pc = p%12
                v_lshrrev_b32 {v(vT2)}, 1, {v(vT0)}
                v_mul_u32_u24 {v(vT2)}, 40, {v(vT2)}
                v_and_b32 {v(vT3)}, 1, {v(vT0)}
                v_lshl_add_u32 {v(vT2)}, {v(vT3)}, 4, {v(vT2)}  ; pc<8: 40*(pc/2)+16*(pc%2)
                v_mul_u32_u24 {v(vT3)}, 40, {v(vT0)}
                v_subrev_u32 {v(vT3)}, {8*40-32}, {v(vT3)}
                v_cmp_gt_u32 vcc, 8, {v(vT0)}
                v_mul_u32_u24 {v(vT1)}, 1280, {v(vT1)}
                s_nop 0
                v_cndmask_b32 {v(vT2)}, {v(vT3)}, {v(vT2)}, vcc
                v_add_u32 {v(vWa[q])}, {v(vT1)}, {v(vT2)}''')
            a(f'''s_lshl_b32 {s(sT0)}, {s(sLW)}, 4
            v_lshrrev_b32 {v(vT0)}, 1, {v(vLane)}
            v_add_u32 {v(vT0)}, {s(sT0)}, {v(vT0)}
            v_mul_u32_u24 {v(vT0)}, 40, {v(vT0)}
            v_and_b32 {v(vT1)}, 1, {v(vLane)}
            v_lshl_add_u32 {v(vKa)}, {v(vT1)}, 4, {v(vT0)}
            s_and_b32 {s(sKo)}, {s(sCG)}, 1
            s_lshl_b32 {s(sKo)}, {s(sKo)}, 5
            s_cmp_ge_u32 {s(sCG)}, 4
            s_cselect_b32 {s(sT0)}, {hex(OOB)}, 0
            v_add_u32 {v(vKa)}, {s(sT0)}, {v(vKa)}
            s_waitcnt lgkmcnt(0)''')
            srd(a, sX, 52, X_BYTES); srd(a, sWt, 54, W_BYTES)
            a(f'''s_cmp_ge_u32 {s(sCG)}, 2
            s_cselect_b32 {s(sKVw)}, s58, s56
            s_cselect_b32 {s(sKVw+1)}, s59, s57
            s_mov_b32 {s(sKVw+2)}, {WKV_BYTES}
            s_mov_b32 {s(sKVw+3)}, 0x20000''')
        else:
            a(f'''s_lshl_b32 {s(sT0)}, {s(sJ)}, 3
            s_lshl_b32 {s(sT1)}, {s(sRB)}, 2
            s_add_u32 {s(sT0)}, {s(sT0)}, {s(sT1)}
            s_add_u32 {s(sT0)}, {s(sT0)}, {s(sLW)}
            s_mul_i32 {s(sXo)}, {s(sT0)}, 1280
            s_and_b32 {s(sT0)}, {s(sCG)}, 3
            s_mul_i32 {s(sWo)}, {s(sT0)}, {80*1280}
            s_mul_i32 {s(sT0)}, {s(sLW)}, 24
            s_mov_b32 {s(sT1)}, 1280''')
            for q in range(3):
                a(f'''v_add_u32 {v(vT3)}, {s(sT0)}, {v(vT0)}
                v_add_u32 {v(vT3)}, {8*q}, {v(vT3)}
                v_and_b32 {v(vWa[q])}, 8, {v(vT3)}
                v_lshlrev_b32 {v(vWa[q])}, 3, {v(vWa[q])}
                v_xor_b32 {v(vWa[q])}, {v(vWa[q])}, {v(vT1)}
                v_mad_u32_u24 {v(vWa[q])}, {v(vT3)}, {s(sT1)}, {v(vWa[q])}
                v_cmp_lt_u32 vcc, 80, {v(vT3)}
                v_mov_b32 {v(vT3)}, {hex(OOB)}
                s_nop 0
                v_cndmask_b32 {v(vWa[q])}, {v(vWa[q])}, {v(vT3)}, vcc''')
            a('s_waitcnt lgkmcnt(0)')
            srd(a, sX, 46, X_BYTES)
            a(f'''s_cmp_ge_u32 {s(sCG)}, 4
            s_cselect_b32 {s(sWt)}, s50, s48
            s_cselect_b32 {s(sWt+1)}, s51, s49
            s_mov_b32 {s(sWt+2)}, {W_BYTES}
            s_mov_b32 {s(sWt+3)}, 0x20000''')
        sBx, sBw, sBk = 60, 61, 62
        a(f'''s_lshl_b32 {s(sBx)}, {s(sLW)}, 12
        s_mul_i32 {s(sBw)}, {s(sLW)}, 3072
        s_add_u32 {s(sBw)}, {s(sBw)}, {WOFF}
        s_lshl_b32 {s(sBk)}, {s(sLW)}, 9
        s_add_u32 {s(sBk)}, {s(sBk)}, {KVOFF}''')
        def chunk(c):
            base = (c % 5) * SLOT
            for i in range(4):
                a(f'''s_add_u32 m0, {s(sBx)}, {base + i*1024}
                s_add_u32 {s(sT0)}, {s(sXo)}, {i*8*xs + c*128}
                buffer_load_dwordx4 {v(vXa[i%2])}, {s(sX,4)}, {s(sT0)} offen lds''')
            wstep = 64*1280 if role == 'Q' else 128
            for q in range(3):
                a(f'''s_add_u32 m0, {s(sBw)}, {base + q*1024}
                s_add_u32 {s(sT0)}, {s(sWo)}, {c*wstep}
                buffer_load_dwordx4 {v(vWa[q])}, {s(sWt,4)}, {s(sT0)} offen lds''')
            if role == 'Q':
                a(f'''s_add_u32 m0, {s(sBk)}, {base}
                s_add_u32 {s(sT0)}, {s(sKo)}, {c*64*40}
                s_mov_b64 exec, {s(sLo,2)}
                buffer_load_dwordx4 {v(vKa)}, {s(sKVw,4)}, {s(sT0)} offen lds
                s_mov_b64 exec, -1''')
        stamp(1)
        for c in range(5): chunk(c)
        stamp(2)
        if role == 'F': fmat()
        for c in range(10):
            left = 4 if c == 0 else min(3, 9-c)
            a(f's_waitcnt vmcnt({left*n})')
            a('s_barrier')
            if c >= 1 and c+4 <= 9: chunk(c+4)
        stamp(3)
    Fm = [16, 20]
    def fmat():
        vJ, vPh, vS = 24, 25, 26
        a(f'''s_mov_b32 {s(sT1)}, {fhex(-0.25)}
        s_cmp_ge_u32 {s(sCG)}, 4
        s_cselect_b32 {s(sT1)}, {fhex(0.25)}, {s(sT1)}
        v_and_b32 {v(vT0)}, 15, {v(vLane)}
        v_lshrrev_b32 {v(vT1)}, 4, {v(vLane)}
        v_and_b32 {v(vT2)}, 1, {v(vT1)}
        v_lshrrev_b32 {v(vT1)}, 1, {v(vT1)}
        v_lshlrev_b32 {v(vT1)}, 4, {v(vT1)}
        v_lshl_add_u32 {v(vT1)}, {v(vT2)}, 2, {v(vT1)}     ; s1 base = 16(g/2)+4(g%2)
        v_cvt_f32_u32 {v(vS)}, {v(vT1)}
        v_cmp_eq_u32 vcc, 0, {v(vT0)}''')
        for hf in range(2):
            if hf == 0:
                a(f'''v_cvt_f32_u32 {v(vJ)}, {v(vT0)}
                v_mov_b32 {v(vPh)}, 0''')
            else:
                a(f'''v_cndmask_b32 {v(vT1)}, {v(vT0)}, 16, vcc
                v_cvt_f32_u32 {v(vJ)}, {v(vT1)}
                v_mov_b32 {v(vPh)}, {s(sT1)}
                v_cndmask_b32 {v(vPh)}, {v(vPh)}, 0, vcc''')
            a(f'''v_mul_f32 {v(vJ)}, {fhex(1/32)}, {v(vJ)}
            v_fma_f32 {v(vPh)}, {v(vJ)}, {v(vS)}, {v(vPh)}''')
            for i in range(8):
                o = 8*(i//4) + i%4
                a(f'v_fmamk_f32 {v(28+i)}, {v(vJ)}, {fhex(float(o))}, {v(vPh)}')
            for i in range(8): a(f'v_cos_f32 {v(28+i)}, {v(28+i)}')
            a('s_nop 0')
            for i in range(4): a(f'v_cvt_pk_bf16_f32 {v(Fm[hf]+i)}, {v(28+2*i)}, {v(29+2*i)}')
    loader('Q')
    diag_out()
    a('s_endpgm')
    a(f"{L('ldF')}:")
    loader('F')
    a(f"s_branch {L('s1')}")
    a(f"{L('compute')}:")
    acc = [64, 80, 96]
    Xf = [40, 44]; Wf = [[112,116,120],[124,128,132]]
    aX = [8, 9, 10, 11]
    aW = [12, 13, 14, 15]
    a2 = [48+i for i in range(8)]
    for m in range(3):
        for i in range(16): a(f'v_mov_b32 {v(acc[m]+i)}, 0')
    a(f'''v_and_b32 {v(vT0)}, 31, {v(vLane)}
    v_lshrrev_b32 {v(vT1)}, 5, {v(vLane)}            ; h
    v_bfe_u32 {v(vT2)}, {v(vLane)}, 1, 3             ; (row>>1)&7
    v_xor_b32 {v(vT2)}, {v(vT2)}, {v(vT1)}
    v_lshlrev_b32 {v(vT0)}, 7, {v(vT0)}
    s_lshl_b32 {s(sT0)}, {s(sW)}, 12''')
    for ks in range(4):
        a(f'''v_xor_b32 {v(vT3)}, {2*ks}, {v(vT2)}
        v_lshl_add_u32 {v(aW[ks])}, {v(vT3)}, 4, {v(vT0)}
        v_add_u32 {v(aX[ks])}, {s(sT0)}, {v(aW[ks])}''')
    a(f'''s_cmp_eq_u32 {s(sRole)}, 0
    s_cbranch_scc0 {L('cF')}''')
    def mainloop(role):
        addrs = aX + (aW if role == 'F' else [aW[0]] + a2)
        cur = [0]
        def rd(c, ks):
            b = (c*4+ks) % 2
            slot = c % 5
            want = (slot//2)*2*SLOT
            if want != cur[0]:
                for r in addrs:
                    d = want - cur[0]
                    a(f'v_add_u32 {v(r)}, {d}, {v(r)}' if d > 0 else f'v_subrev_u32 {v(r)}, {-d}, {v(r)}')
                cur[0] = want
            o = slot*SLOT - want
            a(f'ds_read_b128 {v(Xf[b],4)}, {v(aX[ks])} offset:{o+XOFF}')
            for m in range(3):
                if role == 'F':
                    a(f'ds_read_b128 {v(Wf[b][m],4)}, {v(aW[ks])} offset:{o+WOFF+m*4096}')
                elif m < 2:
                    for r in range(2):
                        a(f'ds_read_b64_tr_b16 {v(Wf[b][m]+2*r,2)}, {v(aW[0])} offset:{o+WOFF+(16*ks+4*r)*192+64*m}')
                else:
                    for r in range(2):
                        a(f'ds_read_b64_tr_b16 {v(Wf[b][m]+2*r,2)}, {v(a2[2*ks+r])} offset:{o}')
        def mm(c, ks):
            b = (c*4+ks) % 2
            for m in range(3):
                A, B = (Wf[b][m], Xf[b]) if role == 'Q' else (Xf[b], Wf[b][m])
                a(f'v_mfma_f32_32x32x16_bf16 {v(acc[m],16)}, {v(A,4)}, {v(B,4)}, {v(acc[m],16)}')
        nr = 7 if role == 'Q' else 4
        for c in range(10):
            a('s_barrier')
            if c == 0: stamp(1)
            rd(c, 0)
            if c > 0: mm(c-1, 3)
            for ks in range(1, 4):
                rd(c, ks)
                a(f's_waitcnt lgkmcnt({nr})')
                mm(c, ks-1)
            a('s_waitcnt lgkmcnt(0)')
        mm(9, 3)
        stamp(2)
    a(f'''v_bfe_u32 {v(vT0)}, {v(vLane)}, 2, 2             ; r
    v_lshl_add_u32 {v(vT0)}, {v(vT1)}, 3, {v(vT0)}   ; k row = 8h + r
    v_and_b32 {v(vT2)}, 3, {v(vLane)}                ; c
    v_bfe_u32 {v(vT3)}, {v(vLane)}, 4, 1             ; G%2
    v_cmp_eq_u32 vcc, 0, {v(vT3)}
    v_lshl_add_u32 {v(vT3)}, {v(vT3)}, 2, {v(vT2)}   ; q
    v_mul_u32_u24 {v(aW[0])}, 192, {v(vT0)}
    v_lshl_add_u32 {v(aW[1])}, {v(vT2)}, 4, {v(aW[0])}
    v_lshl_add_u32 {v(aW[0])}, {v(vT3)}, 3, {v(aW[0])}
    v_lshlrev_b32 {v(aW[2])}, 5, {v(vT0)}
    v_lshl_add_u32 {v(aW[2])}, {v(vT2)}, 3, {v(aW[2])}''')
    for ks in range(4):
        for r in range(2):
            k = 16*ks + 4*r
            a(f'''v_add_u32 {v(vT0)}, {WOFF + 128 + k*192}, {v(aW[1])}
            v_add_u32 {v(vT2)}, {KVOFF + k*32}, {v(aW[2])}
            v_cndmask_b32 {v(a2[2*ks+r])}, {v(vT2)}, {v(vT0)}, vcc''')
    a('s_waitcnt lgkmcnt(0)')
    srd(a, sOut, sWS, Q_BYTES, WS_Q); srd(a, sOut2, sWS, KV_BYTES, WS_KV)
    mainloop('Q')
    sPT = 60; sQo = 61; sKb = 62
    a(f'''s_lshl_b32 {s(sPT)}, {s(sJ)}, 3
    s_lshl_b32 {s(sT1)}, {s(sRB)}, 2
    s_add_u32 {s(sPT)}, {s(sPT)}, {s(sT1)}
    s_lshr_b32 {s(sKb)}, {s(sPT)}, 2
    s_mul_i32 {s(sKb)}, {s(sKb)}, 10240
    s_add_u32 {s(sPT)}, {s(sPT)}, {s(sW)}
    s_lshl_b32 {s(sQo)}, {s(sPT)}, 3
    s_add_u32 {s(sQo)}, {s(sQo)}, {s(sCG)}
    s_mul_i32 {s(sQo)}, {s(sQo)}, 5120
    s_mov_b32 {s(sT0)}, {fhex(QSCALE)}
    v_lshlrev_b32 {v(vT0)}, 4, {v(vLane)}
    v_and_b32 {v(vT2)}, 31, {v(vLane)}
    v_mul_u32_u24 {v(vT3)}, 1280, {v(vT1)}
    v_lshl_add_u32 {v(vT3)}, {v(vT2)}, 3, {v(vT3)}
    s_nop 3''')
    pk = 16
    for m in range(2):
        for i in range(16): a(f'v_mul_f32 {v(acc[m]+i)}, {s(sT0)}, {v(acc[m]+i)}')
        for i in range(8): a(f'v_cvt_pk_bf16_f32 {v(pk+8*m+i)}, {v(acc[m]+2*i)}, {v(acc[m]+2*i+1)}')
        for hh in range(2):
            a(f'buffer_store_dwordx4 {v(pk+8*m+4*hh,4)}, {v(vT0)}, {s(sOut,4)}, {s(sQo)} offen offset:{(2*m+hh)*1280}')
    for i in range(8): a(f'v_mul_f32 {v(acc[2]+i)}, {s(sT0)}, {v(acc[2]+i)}')
    for i in range(8): a(f'v_cvt_pk_bf16_f32 {v(pk+16+i)}, {v(acc[2]+2*i)}, {v(acc[2]+2*i+1)}')
    for j in range(2):
        a(f'buffer_store_dwordx2 {v(pk+16+2*j,2)}, {v(vT3)}, {s(sOut,4)}, {s(sQo)} offen offset:{1024+j*2560}')
    kv = pk+20
    a(f'''s_cmp_ge_u32 {s(sCG)}, 4
    s_cbranch_scc1 {L('qdone')}
    s_cmp_ge_u32 {s(sCG)}, 2
    s_cbranch_scc1 {L('qv')}
    s_cmp_eq_u32 {s(sCG)}, 1
    s_cbranch_scc1 {L('qkb')}
    s_lshl_b32 {s(sT1)}, {s(sW)}, 10
    s_add_u32 {s(sT1)}, {s(sT1)}, {s(sKb)}
    buffer_store_dwordx4 {v(kv,4)}, {v(vT0)}, {s(sOut2,4)}, {s(sT1)} offen
    s_branch {L('qdone')}
{L('qkb')}:
    s_and_b32 {s(sT1)}, {s(sW)}, 1
    s_lshl_b32 {s(sT1)}, {s(sT1)}, 9
    s_lshr_b32 {s(sT2)}, {s(sW)}, 1
    s_lshl_b32 {s(sT2)}, {s(sT2)}, 3
    s_add_u32 {s(sT1)}, {s(sT1)}, {s(sT2)}
    s_add_u32 {s(sT1)}, {s(sT1)}, {s(sKb)}
    s_add_u32 {s(sT1)}, {s(sT1)}, 4096
    s_mov_b64 exec, {s(sLo,2)}
    buffer_store_dwordx2 {v(kv,2)}, {v(vT0)}, {s(sOut2,4)}, {s(sT1)} offen
    s_branch {L('qdone')}
{L('qv')}:
    v_lshrrev_b32 {v(vT3)}, 3, {v(vT2)}
    v_mul_u32_u24 {v(vT3)}, 320, {v(vT3)}
    v_and_b32 {v(vT2)}, 7, {v(vT2)}
    v_lshl_add_u32 {v(vT3)}, {v(vT2)}, 1, {v(vT3)}
    v_lshl_add_u32 {v(vT3)}, {v(vT1)}, 6, {v(vT3)}
    s_mul_i32 {s(sT1)}, {s(sW)}, 1280
    s_add_u32 {s(sT1)}, {s(sT1)}, {s(sKb)}
    s_add_u32 {s(sT1)}, {s(sT1)}, 5120
    s_cmp_eq_u32 {s(sCG)}, 3
    s_cbranch_scc1 {L('qv4')}''')
    for jj in range(2):
        for i in range(4):
            op = 'buffer_store_short' if i % 2 == 0 else 'buffer_store_short_d16_hi'
            a(f'{op} {v(kv+2*jj+i//2)}, {v(vT3)}, {s(sOut2,4)}, {s(sT1)} offen offset:{(8*jj+i)*16}')
    a(f'''s_branch {L('qdone')}
{L('qv4')}:
    s_mov_b64 exec, {s(sLo,2)}''')
    for i in range(4):
        op = 'buffer_store_short' if i % 2 == 0 else 'buffer_store_short_d16_hi'
        a(f'{op} {v(kv+i//2)}, {v(vT3)}, {s(sOut2,4)}, {s(sT1)} offen offset:{(16+i)*16}')
    a(f"{L('qdone')}:")
    stamp(3)
    diag_out()
    a('s_endpgm')
    a(f"{L('cF')}:")
    fmat()
    a('s_waitcnt lgkmcnt(0)')
    mainloop('F')
    a(f'''s_mul_i32 {s(sT0)}, {s(sW)}, 6144
    v_lshl_add_u32 {v(vT0)}, {v(vLane)}, 4, {s(sT0)}
    s_nop 7''')
    a('s_nop 3')
    for m in range(3):
        for i in range(8): a(f'v_cvt_pk_bf16_f32 {v(112+8*m+i)}, {v(acc[m]+2*i)}, {v(acc[m]+2*i+1)}')
        for k2 in range(2): a(f'ds_write_b128 {v(vT0)}, {v(112+8*m+4*k2,4)} offset:{m*2048+k2*1024}')
    a('s_waitcnt lgkmcnt(0)')
    a(f"{L('s1')}:")
    a(f'''s_barrier
    s_cmp_ge_u32 {s(sW)}, 6
    s_cbranch_scc1 {L('fdone')}
    ; lane (col16, g): unit address = tile*2048 + (g/2)*1024 + ((g%2)*32 + 16*(w%2) + col16)*16
    v_and_b32 {v(vT0)}, 15, {v(vLane)}
    v_lshrrev_b32 {v(vT1)}, 4, {v(vLane)}
    v_lshlrev_b32 {v(vT2)}, 9, {v(vT1)}
    v_lshl_add_u32 {v(vT2)}, {v(vT0)}, 4, {v(vT2)}
    s_lshr_b32 {s(sT0)}, {s(sW)}, 1
    s_lshl_b32 {s(sT0)}, {s(sT0)}, 11
    s_and_b32 {s(sT1)}, {s(sW)}, 1
    s_lshl_b32 {s(sT1)}, {s(sT1)}, 8
    s_add_u32 {s(sT0)}, {s(sT0)}, {s(sT1)}
    v_add_u32 {v(vT2)}, {s(sT0)}, {v(vT2)}''')
    for q in range(4): a(f'ds_read_b128 {v(40+4*q,4)}, {v(vT2)} offset:{q*6144}')
    srd(a, sOut, sWS, T_BYTES, WS_T)
    a(f'''s_lshl_b32 {s(sT0)}, {s(sW)}, 4
    v_add_u32 {v(vT0)}, {s(sT0)}, {v(vT0)}
    s_cmp_eq_u32 {s(sCG)}, 3
    s_cselect_b32 {s(sT1)}, 1, 0
    s_add_u32 {s(sT1)}, {s(sT1)}, 80
    s_cmp_eq_u32 {s(sCG)}, 4
    s_cselect_b32 {s(sT2)}, 1, 0
    v_cmp_gt_u32 vcc, {s(sT1)}, {v(vT0)}
    v_cmp_le_u32 s[60:61], {s(sT2)}, {v(vT0)}
    s_mov_b32 {s(sT1)}, {4*81920}
    v_lshlrev_b32 {v(vT0)}, 3, {v(vT0)}
    v_mad_u32_u24 {v(vT0)}, {v(vT1)}, {s(sT1)}, {v(vT0)}
    s_and_b64 vcc, vcc, s[60:61]
    v_mov_b32 {v(vT3)}, {hex(OOB)}
    v_cndmask_b32 {v(vT0)}, {v(vT3)}, {v(vT0)}, vcc
    s_lshl_b32 {s(sT0)}, {s(sJ)}, 1
    s_add_u32 {s(sT0)}, {s(sT0)}, {s(sRB)}
    s_mul_i32 {s(sT0)}, {s(sT0)}, 5120
    s_mul_i32 {s(sT1)}, {s(sCG)}, 640
    s_add_u32 {s(sT0)}, {s(sT0)}, {s(sT1)}''')
    for q in range(4):
        a(f's_waitcnt lgkmcnt({3-q})')
        for hf in range(2):
            a(f'v_mfma_f32_16x16x32_bf16 {v(64+16*hf+4*q,4)}, {v(Fm[hf],4)}, {v(40+4*q,4)}, 0')
    a('s_nop 7')
    for hf in range(2):
        for i in range(4):
            d = 96 + (hf*4+i)*2; b = 64+16*hf+i
            a(f'''v_cvt_pk_bf16_f32 {v(d)}, {v(b)}, {v(b+4)}
            v_cvt_pk_bf16_f32 {v(d+1)}, {v(b+8)}, {v(b+12)}
            s_add_u32 {s(sT1)}, {s(sT0)}, {(16*hf+i)*81920}
            buffer_store_dwordx2 {v(d,2)}, {v(vT0)}, {s(sOut,4)}, {s(sT1)} offen''')
    a(f"{L('fdone')}:")
    stamp(3)
    diag_out()
    a(f"{L('end')}:")
    a('s_endpgm')
    return a.text(), kernel_desc(name, 136), 136

if __name__ == '__main__':
    t, d, nv = gen_k1()
    print(t); print(d)
```

```python
from asmlib import *
from layout import *

def gen_k2(name='attn_kernel', diag=False, prio=True, gpos='postqk2', sched=(3,3,5,5), dpos='postpv1'):
    a = Asm()
    R = Regs(1)
    vLane = R.get(); vT0 = R.get(); vT1 = R.get(); vIdx = R.get(); vDma = R.get()
    aK = [R.get() for _ in range(3)]; aV = [R.get() for _ in range(3)]
    vOoff = R.get(); vOoffB = R.get()
    Qa = R.get(4, 4); Qlo = R.get(2); Qhi = R.get(2)
    Kb = [R.get(4, 4) for _ in range(2)]
    Ka = [[R.get(4, 4) for _ in range(2)] for _ in range(2)]
    Vb = [[R.get(4, 4) for _ in range(4)] for _ in range(2)]
    S = [R.get(16, 4) for _ in range(2)]
    P = R.get(16, 4); O = R.get(16, 4); Mn = R.get(16, 4)
    nv = R.hi
    sW = 3; sWS = 4; sKV = 8; sQ = 12; sO = 16; sDma = 20; sT = 21; sVm = 22; sLo = 24; sCnt = 26; sD = 28
    sTs = 40
    def stamp(i):
        if diag: a(f"{'s_memrealtime' if diag == 'rt' else 's_memtime'} {s(sTs+2*i,2)}")
    a(kernel_head(name))
    a(f'''s_cmp_ge_u32 s2, 256
    s_cbranch_scc1 L_{name}_end''')
    stamp(0)
    a(f'''s_load_dwordx2 {s(sWS,2)}, s[0:1], 96
    v_lshrrev_b32 {v(vT0)}, 6, v0
    v_and_b32 {v(vLane)}, 63, v0
    v_readfirstlane_b32 {s(sW)}, {v(vT0)}
    v_lshlrev_b32 {v(vDma)}, 4, {v(vLane)}
    s_and_b32 s30, s2, 7
    s_lshr_b32 s31, s2, 3
    s_lshl_b32 s30, s30, 3
    s_lshr_b32 s32, s31, 2
    s_add_u32 s30, s30, s32
    s_and_b32 s31, s31, 3
    s_lshl_b32 s31, s31, 3
    s_add_u32 s31, s31, {s(sW)}        ; head
    s_lshl_b32 s32, s30, 5
    s_add_u32 s32, s32, s31
    s_mul_i32 s32, s32, 1280
    s_lshl_b32 {s(sDma)}, {s(sW)}, 10
    s_mov_b32 m0, {s(sDma)}
    v_and_b32 {v(vT0)}, 31, {v(vLane)}
    v_lshlrev_b32 {v(vT1)}, 3, {v(vT0)}
    s_waitcnt lgkmcnt(0)''')
    srd(a, sKV, sWS, KV_BYTES, WS_KV)
    srd(a, sQ, sWS, Q_BYTES, WS_Q)
    ndma = [0]
    def dma():
        r = ndma[0]; ndma[0] += 1
        a(f'buffer_load_dwordx4 {v(vDma)}, {s(sKV,4)}, {s(sDma)} offen lds')
        if r < 19:
            a(f's_add_u32 {s(sDma)}, {s(sDma)}, 8192')
            a(f's_mov_b32 m0, {s(sDma)}')
    dma()
    a(f'''buffer_load_dwordx4 {v(Qa,4)}, {v(vDma)}, {s(sQ,4)}, s32 offen
    buffer_load_dwordx2 {v(Qhi,2)}, {v(vT1)}, {s(sQ,4)}, s32 offen offset:1024''')
    dma(); a('s_nop 0'); dma(); a('s_nop 0'); dma()
    srd(a, sO, sWS, O_BYTES, WS_O)
    a(f'''s_mul_i32 s33, s30, 40960
    s_lshr_b32 s34, s31, 2
    s_mul_i32 s34, s34, 5120
    s_add_u32 s33, s33, s34
    s_and_b32 s34, s31, 3
    s_lshl_b32 s35, s34, 10
    s_add_u32 s35, s35, s33
    v_add_u32 {v(vOoff)}, s35, {v(vDma)}
    s_lshr_b32 s35, s34, 1
    s_lshl_b32 s35, s35, 9
    s_and_b32 s34, s34, 1
    s_lshl_b32 s34, s34, 3
    s_add_u32 s35, s35, s34
    s_add_u32 s35, s35, s33
    s_add_u32 s35, s35, 4096
    v_add_u32 {v(vOoffB)}, s35, {v(vDma)}''')
    a(f'''v_lshrrev_b32 {v(vT1)}, 5, {v(vLane)}
    v_mul_u32_u24 {v(vT1)}, 20, {v(vT1)}
    v_add_u32 {v(vT1)}, {v(vT1)}, {v(vT0)}
    v_lshlrev_b32 {v(vT1)}, 4, {v(vT1)}''')
    for b in range(3):
        a(f'v_add_u32 {v(aK[b])}, {b*61440}, {v(vDma)}')
        a(f'v_add_u32 {v(aV[b])}, {b*61440+5120}, {v(vT1)}')
    a(f'''s_mov_b32 {s(sVm)}, 0x000fffff
    s_mov_b32 {s(sVm+1)}, 0x000fffff
    s_mov_b32 {s(sLo)}, -1
    s_mov_b32 {s(sLo+1)}, 0
    v_mov_b32 {v(vIdx)}, 0xdddddddd''')
    for p in range(2):
        for f in range(4):
            for i in range(4): a(f'v_mov_b32 {v(Vb[p][f]+i)}, 0x3f803f80')
    for i in range(16): a(f'v_mov_b32 {v(O+i)}, 0')

    def rdKa(dst, t):
        u, tt = divmod(t, 4); b, uu = divmod(u, 6)
        a(f'ds_read_b128 {v(dst,4)}, {v(aK[b])} offset:{uu*10240 + tt*1024}')
    def rdKb(u):
        b, uu = divmod(u, 6)
        a(f'ds_read_b128 {v(Kb[u%2],4)}, {v(aK[b])} offset:{uu*10240 + 4096}')
    def rdV(dst, t, f):
        u, tt = divmod(t, 4); b, uu = divmod(u, 6)
        a(f'ds_read_b128 {v(dst,4)}, {v(aV[b])} offset:{uu*10240 + (tt*2+f)*640}')
    def group(g, part='all'):
        p = g % 2
        if part in ('all', 'k'):
            if 2*g+1 < 64: rdKa(Ka[p][0], 2*g+1)
            if 2*g+2 < 64: rdKa(Ka[p][1], 2*g+2)
            if (2*g+2) % 4 == 0 and 2*g+2 < 64: rdKb((2*g+2)//4)
        if part in ('all', 'v'):
            a(f's_mov_b64 exec, {s(sVm,2)}')
            if g > 0: rdV(Vb[p][0], 2*g-1, 1)
            if g < 32:
                rdV(Vb[p][1], 2*g, 0); rdV(Vb[p][2], 2*g, 1); rdV(Vb[p][3], 2*g+1, 0)
            a('s_mov_b64 exec, -1')
    def qk1(t, ka, c):
        a(f'v_mfma_f32_32x32x16_bf16 {v(S[t%2],16)}, {v(ka,4)}, {v(Qa,4)}, {c}')
    def qk2(t):
        kb = Kb[(t//4)%2] + 2*((t%4)//2)
        q = Qlo if t % 2 == 0 else Qhi
        a(f'v_mfma_f32_32x32x8bf16_1k {v(S[t%2],16)}, {v(kb,2)}, {v(q,2)}, {v(S[t%2],16)}')
    def pv(vf, half):
        a(f'v_smfmac_f32_32x32x32_bf16 {v(O,16)}, {v(vf,4)}, {v(P+8*half,8)}, {v(vIdx)}')

    a('s_waitcnt vmcnt(3)')
    a('s_barrier')
    stamp(1)
    rdKa(Ka[1][1], 0); rdKb(0)
    group(0)
    a(f'''v_cndmask_b32 {v(Qlo)}, 0, {v(Qhi)}, {s(sLo,2)}
    v_cndmask_b32 {v(Qlo+1)}, 0, {v(Qhi+1)}, {s(sLo,2)}
    v_cndmask_b32 {v(Qhi)}, {v(Qhi)}, 0, {s(sLo,2)}
    v_cndmask_b32 {v(Qhi+1)}, {v(Qhi+1)}, 0, {s(sLo,2)}
    s_waitcnt lgkmcnt(5)''')
    qk1(0, Ka[1][1], '0'); qk2(0)
    dma(); a('s_nop 0'); dma()
    a('s_nop 7')
    s0 = S[0]
    a(f'v_max3_f32 {v(vT0)}, {v(s0)}, {v(s0+1)}, {v(s0+2)}')
    a(f'v_max3_f32 {v(vT1)}, {v(s0+3)}, {v(s0+4)}, {v(s0+5)}')
    for i in range(6, 14, 4):
        a(f'v_max3_f32 {v(vT0)}, {v(vT0)}, {v(s0+i)}, {v(s0+i+1)}')
        a(f'v_max3_f32 {v(vT1)}, {v(vT1)}, {v(s0+i+2)}, {v(s0+i+3)}')
    a(f'v_max3_f32 {v(vT0)}, {v(vT0)}, {v(s0+14)}, {v(s0+15)}')
    a(f'v_max_f32 {v(vT0)}, {v(vT0)}, {v(vT1)}')
    a(f'''v_mov_b32 {v(vT1)}, {v(vT0)}
    s_nop 1
    v_permlane32_swap_b32 {v(vT0)}, {v(vT1)}
    s_nop 1
    v_max_f32 {v(vT0)}, {v(vT0)}, {v(vT1)}
    v_sub_f32 {v(Mn)}, {-M_OFF}, {v(vT0)}''')
    for i in range(1, 16): a(f'v_mov_b32 {v(Mn+i)}, {v(Mn)}')
    for i in range(0, 16, 2):
        a(f'v_pk_add_f32 {v(s0+i,2)}, {v(s0+i,2)}, {v(Mn,2)}')
    stamp(2)
    def need_bytes(g):
        t = min(2*g+2, 63); u, tt = divmod(t, 4)
        hi = u*10240 + 5120
        t = min(2*g+1, 63); u, tt = divmod(t, 4)
        return max(hi, u*10240 + 5120 + (tt*2+2)*640)
    synced = [8192]
    sync_plan = {1: 3, 5: 11, 17: 19}
    prio_plan = {}
    if prio:
        prio_plan = {0: 3, 4: 2, 6: 1, 7: 0, 8: 3, 22: 2, 28: 1, 31: 0, 32: 3, 52: 2, 59: 1, 63: 0}
    def body(t):
        g, o = divmod(t, 2); p = g % 2
        cur = S[t%2]
        ei = [0]
        def e(n):
            for _ in range(n):
                a(f'v_exp_f32 {v(P+ei[0])}, {v(cur+ei[0])}'); ei[0] += 1
        def grp(part):
            gn = g+1
            if part in ('all', 'k'):
                if gn in sync_plan:
                    r = sync_plan[gn]
                    assert ndma[0] > r
                    a(f's_waitcnt vmcnt({ndma[0]-1-r})')
                    a('s_barrier')
                    synced[0] = (r+1)*8192
                assert need_bytes(gn) <= synced[0], (gn, need_bytes(gn), synced[0])
            group(gn, part)
        if t in prio_plan: a(f's_setprio {prio_plan[t]}')
        if o == 0:
            a('s_waitcnt lgkmcnt(0)')
        if t+1 < 64: qk1(t+1, Ka[p][o], v(Mn,16))
        e(sched[0])
        if t > 0: pv(Vb[p][2*o], 1)
        e(sched[1])
        if t+1 < 64: qk2(t+1)
        if o == 0 and gpos == 'postqk2': grp('all')
        e(sched[2])
        if o == 0 and gpos == 'prepv1': grp('all')
        if o == 0 and gpos == 'split': grp('k')
        if ndma[0] < 20 and dpos == 'prepv1': dma()
        pv(Vb[p][2*o+1], 0)
        if ndma[0] < 20 and dpos == 'postpv1': dma()
        e(sched[3])
        if o == 0 and gpos == 'end': grp('all')
        if o == 0 and gpos == 'split': grp('v')
        if t == 62: a('s_nop 1')
    for t in range(64): body(t)
    a('s_waitcnt lgkmcnt(0)')
    a('s_nop 0')
    pv(Vb[0][0], 1)
    stamp(3)
    a('s_nop 15')
    a(f'v_mul_f32 {v(vT0)}, 0, {v(O)}')
    for i in range(1, 13): a(f'v_fmac_f32 {v(vT0)}, 0, {v(O+i)}')
    a(f'''v_cmp_u_f32 vcc, {v(vT0)}, {v(vT0)}
    s_cbranch_vccnz L_{name}_slow
L_{name}_fin:
    v_rcp_f32 {v(vT0)}, {v(O+12)}
    s_nop 0''')
    for i in range(12): a(f'v_mul_f32 {v(O+i)}, {v(O+i)}, {v(vT0)}')
    for i in range(6): a(f'v_cvt_pk_bf16_f32 {v(P+i)}, {v(O+2*i)}, {v(O+2*i+1)}')
    a(f'''buffer_store_dwordx4 {v(P,4)}, {v(vOoff)}, {s(sO,4)}, 0 offen
    s_mov_b64 exec, {s(sLo,2)}
    buffer_store_dwordx2 {v(P+4,2)}, {v(vOoffB)}, {s(sO,4)}, 0 offen''')
    if diag:
        a('s_waitcnt vmcnt(0)')
        stamp(4)
        srd(a, sD, sWS, 0x10000, WS_DIAG + (0x10000*1 if diag == 'rt' else 0))
        a(f'''s_waitcnt lgkmcnt(0)
        s_lshl_b32 s36, s2, 3
        s_add_u32 s36, s36, {s(sW)}
        s_lshl_b32 s36, s36, 5
        v_mov_b32 {v(vT0)}, s36
        s_mov_b64 exec, 1''')
        for i in range(5): a(f'v_mov_b32 {v(S[0]+i)}, {s(sTs+2*i)}')
        a(f'''buffer_store_dwordx4 {v(S[0],4)}, {v(vT0)}, {s(sD,4)}, 0 offen
        buffer_store_dwordx4 {v(S[0]+4,4)}, {v(vT0)}, {s(sD,4)}, 0 offen offset:16''')
    a(f'L_{name}_end:')
    a('s_endpgm')
    a(f'L_{name}_slow:')
    a(f'v_mov_b32 {v(Mn)}, 0xff800000')
    for ps in range(2):
        a(f'''v_mov_b32 {v(aK[1])}, {v(aK[0])}
        v_mov_b32 {v(aV[1])}, {v(aV[0])}
        s_mov_b32 {s(sCnt)}, 16
L_{name}_slow{ps}:
        ds_read_b128 {v(Kb[0],4)}, {v(aK[1])} offset:4096''')
        for tt in range(4):
            a(f'ds_read_b128 {v(Ka[0][0],4)}, {v(aK[1])} offset:{tt*1024}')
            if ps == 1:
                a(f'''s_mov_b64 exec, {s(sVm,2)}
                ds_read_b128 {v(Vb[0][0],4)}, {v(aV[1])} offset:{tt*1280}
                ds_read_b128 {v(Vb[0][1],4)}, {v(aV[1])} offset:{tt*1280+640}
                s_mov_b64 exec, -1''')
            a('s_waitcnt lgkmcnt(0)')
            a(f'v_mfma_f32_32x32x16_bf16 {v(s0,16)}, {v(Ka[0][0],4)}, {v(Qa,4)}, 0')
            a(f'v_mfma_f32_32x32x8bf16_1k {v(s0,16)}, {v(Kb[0]+2*(tt//2),2)}, {v(Qlo if tt%2==0 else Qhi,2)}, {v(s0,16)}')
            a('s_nop 15')
            if ps == 0:
                for i in range(0, 16, 2): a(f'v_max3_f32 {v(Mn)}, {v(Mn)}, {v(s0+i)}, {v(s0+i+1)}')
            else:
                for i in range(16): a(f'v_sub_f32 {v(s0+i)}, {v(s0+i)}, {v(Mn)}')
                for i in range(16): a(f'v_exp_f32 {v(P+i)}, {v(s0+i)}')
                a('s_nop 1')
                pv(Vb[0][0], 0); pv(Vb[0][1], 1)
                a('s_nop 7')
        a(f'''v_add_u32 {v(aK[1])}, 10240, {v(aK[1])}
        v_add_u32 {v(aV[1])}, 10240, {v(aV[1])}
        s_sub_u32 {s(sCnt)}, {s(sCnt)}, 1
        s_cmp_lg_u32 {s(sCnt)}, 0
        s_cbranch_scc1 L_{name}_slow{ps}''')
        if ps == 0:
            a(f'''v_mov_b32 {v(vT1)}, {v(Mn)}
            s_nop 1
            v_permlane32_swap_b32 {v(Mn)}, {v(vT1)}
            s_nop 1
            v_max_f32 {v(Mn)}, {v(Mn)}, {v(vT1)}''')
            for i in range(16): a(f'v_mov_b32 {v(O+i)}, 0')
    a(f'''s_nop 15
    s_branch L_{name}_fin''')
    return a.text(), kernel_desc(name, nv), nv

if __name__ == '__main__':
    t, d, nv = gen_k2()
    print(t); print(d); print('; nv', nv)
```

```python
from asmlib import *
from layout import *
from images import o_kmap
OOB = 0x40000000

def s2_setup(a, L, sq, sJ, vLane, sr, vr):
    t0, t1, t2 = sr['t0'], sr['t1'], sr['t2']
    sl, et = sr['slot'], sr['et']
    x0, x1, x2 = vr['t0'], vr['t1'], vr['t2']
    a(f'''s_mul_i32 {s(t0)}, {s(sq)}, 3277
    s_lshr_b32 {s(t0)}, {s(t0)}, 16                 ; q/20
    s_mul_i32 {s(t1)}, {s(t0)}, 20
    s_sub_u32 {s(et)}, {s(sq)}, {s(t1)}             ; q%20
    s_lshl_b32 {s(sl)}, {s(sJ)}, 2
    s_add_u32 {s(sl)}, {s(sl)}, {s(t0)}
    s_cmp_lt_u32 {s(sq)}, 80
    s_cbranch_scc1 {L('s2norm')}
    s_cmp_ge_u32 {s(sq)}, 83
    s_cbranch_scc1 {L('nojob')}
    s_mul_i32 {s(t1)}, {s(sJ)}, 3
    s_add_u32 {s(et)}, {s(et)}, {s(t1)}
    s_mov_b32 {s(sl)}, 32
    s_cmp_ge_u32 {s(et)}, 20
    s_cbranch_scc1 {L('nojob')}
{L('s2norm')}:
    s_lshr_b32 {s(t0)}, {s(sl)}, 1
    s_and_b32 {s(t0)}, {s(t0)}, 15
    s_and_b32 {s(t1)}, {s(sl)}, 1
    s_lshl_b32 {s(t2)}, {s(t1)}, 10
    s_add_u32 {s(t2)}, {s(t2)}, {s(t0)}
    s_add_u32 {s(sr['pS'])}, {s(t0)}, 16
    s_mul_i32 {s(sr['pS'])}, {s(sr['pS'])}, 81920
    s_cmp_eq_u32 {s(t0)}, 0
    s_cselect_b32 {s(sr['pS'])}, {hex(OOB)}, {s(sr['pS'])}
    s_cmp_eq_u32 {s(sl)}, 1
    s_cselect_b32 {s(t0)}, 16, {s(t0)}
    s_cselect_b32 {s(t2)}, 16, {s(t2)}
    s_cmp_eq_u32 {s(sl)}, 32
    s_cselect_b32 {s(t2)}, 0x400, {s(t2)}
    s_mul_i32 {s(sr['pC'])}, {s(t0)}, 81920
    v_and_b32 {v(x0)}, 31, {v(vLane)}
    v_lshrrev_b32 {v(x1)}, 5, {v(vLane)}            ; h
    v_lshl_add_u32 {v(x2)}, {v(x0)}, 5, {s(t2)}     ; t
    v_lshlrev_b32 {v(vr['aR'])}, 12, {v(x2)}
    v_lshl_add_u32 {v(vr['aR'])}, {v(x1)}, 4, {v(vr['aR'])}
    s_mov_b32 {s(t1)}, 2560
    s_lshl_b32 {s(t0)}, {s(et)}, 6
    v_lshl_add_u32 {v(vr['oU'])}, {v(x1)}, 4, {s(t0)}
    v_sub_u32 {v(vr['aA'])}, 0x800, {v(x2)}
    v_mad_u32_u24 {v(vr['oW'])}, {v(vr['aA'])}, {s(t1)}, {v(vr['oU'])}
    v_mad_u32_u24 {v(vr['oU'])}, {v(x2)}, {s(t1)}, {v(vr['oU'])}
    s_cmp_eq_u32 {s(sl)}, 32
    s_cbranch_scc0 {L('s2rows')}
    v_cmp_eq_u32 vcc, 0, {v(x0)}
    v_mov_b32 {v(vr['oW'])}, {hex(OOB)}
    s_nop 0
    v_cndmask_b32 {v(vr['oU'])}, {v(vr['oW'])}, {v(vr['oU'])}, vcc
{L('s2rows')}:
    s_cmp_ge_u32 {s(et)}, 10
    s_cbranch_scc0 {L('s2dir')}
    v_swap_b32 {v(vr['oU'])}, {v(vr['oW'])}
{L('s2dir')}:
    v_and_b32 {v(x2)}, 0x13, {v(x0)}
    v_bfe_u32 {v(vr['aA'])}, {v(x0)}, 2, 1
    v_lshl_add_u32 {v(x2)}, {v(vr['aA'])}, 3, {v(x2)}
    v_bfe_u32 {v(vr['aA'])}, {v(x0)}, 3, 1
    v_lshl_add_u32 {v(x2)}, {v(vr['aA'])}, 2, {v(x2)}
    s_lshl_b32 {s(t0)}, {s(et)}, 5
    v_add_u32 {v(x2)}, {s(t0)}, {v(x2)}             ; e'
    v_sub_u32 {v(x0)}, 0x280, {v(x2)}
    v_min_u32 {v(x2)}, {v(x2)}, {v(x0)}             ; e
    v_mul_u32_u24 {v(x1)}, 10240, {v(x1)}
    v_lshl_add_u32 {v(vr['aA'])}, {v(x2)}, 3, {v(x1)}
    v_add_u32 {v(vr['aB'])}, 2560, {v(vr['aA'])}
    v_subrev_u32 {v(x2)}, 1, {v(x2)}
    v_cmp_gt_u32 vcc, 319, {v(x2)}
    v_mov_b32 {v(x0)}, {hex(OOB)}
    s_nop 0
    v_cndmask_b32 {v(vr['aB'])}, {v(x0)}, {v(vr['aB'])}, vcc''')

def gen_k3(name='outp_kernel', diag=False, with_s2=True):
    a = Asm()
    sW=3; sJ=4; sI=5; sPB=6; sNG=7
    sO=8; sWo=12; sOut=16; sT=20; sR=24; sN=28; sD=32
    sT0=36; sT1=37; sT2=38; sLW=39; sWS=40; sQ=42
    sTs=70
    L = lambda x: f'L_{name}_{x}'
    def stamp(i):
        if diag: a(f"{'s_memrealtime' if diag == 'rt' else 's_memtime'} {s(sTs+2*i,2)}")
    def diag_out():
        if not diag: return
        a('s_waitcnt vmcnt(0)')
        stamp(4)
        srd(a, sD, sWS, 0x10000, WS_DIAG + (0x10000*2 if diag == 'rt' else 0))
        a(f'''s_waitcnt lgkmcnt(0)
        s_lshl_b32 {s(sT0)}, s2, 3
        s_add_u32 {s(sT0)}, {s(sT0)}, {s(sW)}
        s_lshl_b32 {s(sT0)}, {s(sT0)}, 5
        s_mov_b64 exec, 1
        v_mov_b32 v1, {s(sT0)}''')
        for i in range(5): a(f'v_mov_b32 {v(4+i)}, {s(sTs+2*i)}')
        a(f'''buffer_store_dwordx4 v[4:7], v1, {s(sD,4)}, 0 offen
        buffer_store_dwordx4 v[8:11], v1, {s(sD,4)}, 0 offen offset:16''')
    vLane=1; vT0=2; vT1=3; vT2=4; vT3=5
    a(kernel_head(name))
    a(f'''s_cmp_ge_u32 s2, 256
    s_cbranch_scc1 {L('end')}''')
    stamp(0)
    a(f'''s_load_dwordx4 s[44:47], s[0:1], 8
    s_load_dwordx4 s[48:51], s[0:1], 72
    s_load_dwordx2 {s(sWS,2)}, s[0:1], 96
    v_lshrrev_b32 {v(vT0)}, 6, v0
    v_and_b32 {v(vLane)}, 63, v0
    v_readfirstlane_b32 {s(sW)}, {v(vT0)}
    s_and_b32 {s(sJ)}, s2, 7
    s_lshr_b32 {s(sI)}, s2, 3
    s_and_b32 {s(sNG)}, {s(sI)}, 7
    s_lshr_b32 {s(sPB)}, {s(sI)}, 3
    s_lshl_b32 {s(sT0)}, {s(sJ)}, 2
    s_add_u32 {s(sPB)}, {s(sPB)}, {s(sT0)}
    s_cmp_ge_u32 {s(sW)}, 4
    s_cbranch_scc0 {L('compute')}''')
    vWa = [8+i for i in range(5)]
    a(f'''s_sub_u32 {s(sLW)}, {s(sW)}, 4
    s_mov_b32 {s(sT1)}, 6554''')
    for q in range(5):
        a(f'''v_add_u32 {v(vT0)}, {64*q}, {v(vLane)}
        v_mul_u32_u24 {v(vT1)}, {s(sT1)}, {v(vT0)}
        v_lshrrev_b32 {v(vT1)}, 16, {v(vT1)}          ; row = p/10
        v_mul_u32_u24 {v(vT1)}, {1280-160}, {v(vT1)}
        v_lshl_add_u32 {v(vWa[q])}, {v(vT0)}, 4, {v(vT1)}''')
    a(f'''s_mul_i32 {s(sT1)}, {s(sLW)}, {32*1280}
    s_mul_i32 {s(sT2)}, {s(sNG)}, 160
    s_add_u32 {s(sT1)}, {s(sT1)}, {s(sT2)}
    s_mul_i32 {s(sT2)}, {s(sLW)}, 5120
    s_waitcnt lgkmcnt(0)''')
    srd(a, sWo, 48, W_BYTES)
    stamp(1)
    def rnd(r):
        for q in range(5):
            a(f'''s_add_u32 m0, {s(sT2)}, {r*20480 + q*1024}
            s_add_u32 {s(sT0)}, {s(sT1)}, {r*128*1280}
            buffer_load_dwordx4 {v(vWa[q])}, {s(sWo,4)}, {s(sT0)} offen lds''')
    rnd(0); rnd(1); rnd(2)
    a('s_waitcnt vmcnt(10)\ns_barrier'); rnd(3)
    a('s_waitcnt vmcnt(10)\ns_barrier'); rnd(4)
    a('s_waitcnt vmcnt(10)\ns_barrier')
    a('s_waitcnt vmcnt(5)\ns_barrier')
    a('s_waitcnt vmcnt(0)\ns_barrier')
    stamp(2)
    if with_s2:
        sr = dict(t0=sT0, t1=sT1, t2=sT2, slot=52, et=53, pC=54, pS=55)
        vr = dict(t0=vT0, t1=vT1, t2=vT2, aR=8, aA=9, aB=10, oU=11, oW=12)
        a(f'''s_cmp_eq_u32 {s(sLW)}, 3
        s_cbranch_scc1 {L('nojob')}
        s_mul_i32 {s(sQ)}, {s(sI)}, 3
        s_add_u32 {s(sQ)}, {s(sQ)}, {s(sLW)}''')
        s2_setup(a, L, sQ, sJ, vLane, sr, vr)
        srd(a, sT, sWS, T_BYTES, WS_T); srd(a, sR, 44, SEQ_BYTES); srd(a, sN, 46, SEQ_BYTES); srd(a, sOut, 50, OUT_BYTES)
        Rf, Nf, Tf, P, Q = 16, 32, 48, 112, 128
        for ks in range(4):
            a(f'buffer_load_dwordx4 {v(Rf+4*ks,4)}, {v(vr["aR"])}, {s(sR,4)}, 0 offen offset:{32*ks}')
            a(f'buffer_load_dwordx4 {v(Nf+4*ks,4)}, {v(vr["aR"])}, {s(sN,4)}, 0 offen offset:{32*ks}')
        chains = [('aA','pC',Rf,P), ('aB','pC',Nf,Q), ('aA','pS',Nf,P), ('aB','pS',Rf,Q)]
        for ci, (ad, pl, cf, ac) in enumerate(chains):
            for ks in range(4):
                for rd in range(2):
                    a(f'''s_add_u32 {s(sT0)}, {s(sr[pl])}, {(4*ks+rd)*5120}
                    buffer_load_dwordx2 {v(Tf+16*ci+4*ks+2*rd,2)}, {v(vr[ad])}, {s(sT,4)}, {s(sT0)} offen''')
        for ci, (ad, pl, cf, ac) in enumerate(chains):
            a(f's_waitcnt vmcnt({8*(3-ci)})')
            for ks in range(4):
                c = '0' if (ci < 2 and ks == 0) else v(ac,16)
                a(f'v_mfma_f32_32x32x16_bf16 {v(ac,16)}, {v(Tf+16*ci+4*ks,4)}, {v(cf+4*ks,4)}, {c}')
        a('s_nop 15')
        for i in range(0, 16, 2):
            a(f'v_pk_add_f32 {v(16+i,2)}, {v(P+i,2)}, {v(Q+i,2)} neg_lo:[0,1] neg_hi:[0,1]')
            a(f'v_pk_add_f32 {v(32+i,2)}, {v(P+i,2)}, {v(Q+i,2)}')
        for i in range(16): a(f'v_cvt_pk_bf16_f32 {v(48+i)}, {v(16+2*i)}, {v(17+2*i)}')
        for hh in range(2):
            a(f'buffer_store_dwordx4 {v(48+4*hh,4)}, {v(vr["oU"])}, {s(sOut,4)}, 0 offen offset:{32*hh}')
            a(f'buffer_store_dwordx4 {v(56+4*hh,4)}, {v(vr["oW"])}, {s(sOut,4)}, 0 offen offset:{32*hh}')
        a(f"{L('nojob')}:")
    stamp(3)
    diag_out()
    a('s_endpgm')
    a(f"{L('compute')}:")
    Of = 64
    acc = [144+4*m for m in range(5)]
    Wf = [[16+4*m for m in range(5)], [36+4*m for m in range(5)]]
    aW = [6+i for i in range(10)]
    vO = 56; vSt = 57
    a(f'''v_and_b32 {v(vT0)}, 15, {v(vLane)}
    v_lshrrev_b32 {v(vT1)}, 4, {v(vLane)}            ; g
    v_lshlrev_b32 {v(vO)}, 9, {v(vT1)}
    v_lshl_add_u32 {v(vO)}, {v(vT0)}, 4, {v(vO)}
    s_lshl_b32 {s(sT0)}, {s(sPB)}, 1
    s_lshr_b32 {s(sT1)}, {s(sW)}, 1
    s_add_u32 {s(sT0)}, {s(sT0)}, {s(sT1)}
    s_mul_i32 {s(sT0)}, {s(sT0)}, 40960
    s_and_b32 {s(sT1)}, {s(sW)}, 1
    s_lshl_b32 {s(sT1)}, {s(sT1)}, 8
    s_add_u32 {s(sT0)}, {s(sT0)}, {s(sT1)}
    s_waitcnt lgkmcnt(0)''')
    srd(a, sO, sWS, O_BYTES, WS_O)
    for st in range(20):
        a(f'buffer_load_dwordx4 {v(Of+4*st,4)}, {v(vO)}, {s(sO,4)}, {s(sT0)} offen offset:{(st%2)*2048}')
        if st % 2 == 1 and st < 19: a(f's_add_u32 {s(sT0)}, {s(sT0)}, 4096')
    srd(a, sOut, 50, OUT_BYTES)
    km = o_kmap()
    a(f'''v_bfe_u32 {v(vT2)}, {v(vLane)}, 2, 2
    v_mul_u32_u24 {v(vT2)}, 160, {v(vT2)}
    v_and_b32 {v(vT3)}, 3, {v(vLane)}
    v_lshl_add_u32 {v(vT2)}, {v(vT3)}, 3, {v(vT2)}
    v_lshlrev_b32 {v(vT3)}, 3, {v(vT1)}''')
    for st in range(5):
        for rd in range(2):
            rows = [int(km[2*st + g//2, g%2, 4*rd]) for g in range(4)]
            packed = sum(r << (8*g) for g, r in enumerate(rows))
            a(f'''s_mov_b32 {s(sT1)}, {hex(packed)}
            v_bfe_u32 {v(aW[2*st+rd])}, {s(sT1)}, {v(vT3)}, 8
            v_mul_u32_u24 {v(aW[2*st+rd])}, 160, {v(aW[2*st+rd])}
            v_add_u32 {v(aW[2*st+rd])}, {v(aW[2*st+rd])}, {v(vT2)}''')
    a(f'''s_lshl_b32 {s(sT0)}, {s(sPB)}, 2
    s_add_u32 {s(sT0)}, {s(sT0)}, {s(sW)}
    s_mul_i32 {s(sT0)}, {s(sT0)}, {16*2560}
    s_mul_i32 {s(sT1)}, {s(sNG)}, 160
    s_add_u32 {s(sT0)}, {s(sT0)}, {s(sT1)}
    s_add_u32 {s(sT0)}, {s(sT0)}, 1280
    v_mul_u32_u24 {v(vT0)}, 2560, {v(vT0)}
    v_lshl_add_u32 {v(vSt+1)}, {v(vT1)}, 3, {v(vT0)}     ; 8B pieces
    v_and_b32 {v(vT2)}, 1, {v(vT1)}
    v_lshl_add_u32 {v(vT0)}, {v(vT2)}, 5, {v(vT0)}
    v_lshrrev_b32 {v(vT2)}, 1, {v(vT1)}
    v_lshl_add_u32 {v(vSt)}, {v(vT2)}, 4, {v(vT0)}''')
    maxrow = [int(km[2*st:2*st+2].max()) for st in range(20)]
    landed = [0]; bumped = [False]
    def rdW(st):
        while maxrow[st] >= landed[0]:
            a('s_barrier'); landed[0] += 128
            if landed[0] == 128: stamp(1)
        per, ss = divmod(st, 5)
        if per == 2 and not bumped[0]:
            for r in aW: a(f'v_add_u32 {v(r)}, {2*25600}, {v(r)}')
            bumped[0] = True
        for m in range(5):
            for rd in range(2):
                a(f'ds_read_b64_tr_b16 {v(Wf[st%2][m]+2*rd,2)}, {v(aW[2*ss+rd])} offset:{(per%2)*25600+32*m}')
    rdW(0)
    for st in range(20):
        if st < 19:
            rdW(st+1)
            a(f's_waitcnt vmcnt({19-st}) lgkmcnt(10)')
        else:
            a('s_waitcnt vmcnt(0) lgkmcnt(0)')
        for m in range(5):
            c = '0' if st == 0 else v(acc[m],4)
            a(f'v_mfma_f32_16x16x32_bf16 {v(acc[m],4)}, {v(Wf[st%2][m],4)}, {v(Of+4*st,4)}, {c}')
    assert landed[0] == 640
    stamp(2)
    a('s_nop 7')
    for m in range(5):
        for i in range(2): a(f'v_cvt_pk_bf16_f32 {v(16+2*m+i)}, {v(acc[m]+2*i)}, {v(acc[m]+2*i+1)}')
    a(f'buffer_store_dwordx2 {v(24,2)}, {v(vSt+1)}, {s(sOut,4)}, {s(sT0)} offen offset:128')
    for pr in range(2):
        a(f'''v_permlane16_swap_b32 {v(16+4*pr)}, {v(18+4*pr)}
        v_permlane16_swap_b32 {v(17+4*pr)}, {v(19+4*pr)}''')
    for pr in range(2):
        a(f'buffer_store_dwordx4 {v(16+4*pr,4)}, {v(vSt)}, {s(sOut,4)}, {s(sT0)} offen offset:{64*pr}')
    stamp(3)
    diag_out()
    a(f"{L('end')}:")
    a('s_endpgm')
    return a.text(), kernel_desc(name, 164), 164
```

```python
WS_KV = 0x0
KV_BYTES = 163840
WS_Q  = 0x40000
Q_BYTES = 2048*1280
WS_O  = 0x300000
O_BYTES = 64*40960
WS_G  = 0x600000
WS_DIAG = 0x1000000
M_OFF = 48.0
WS_T = WS_G
T_BYTES = 32*16*640*8
X_BYTES = 2048*1280
W_BYTES = 640*1280
WKV_BYTES = 640*40
SEQ_BYTES = 2048*4096
OUT_BYTES = 2048*2560
import math
QSCALE = math.log2(math.e) / math.sqrt(20.0)
```

```python
import sys
sys.path.insert(0, 'gen')
import k1, k2, k3
NAME = 'concat_heads__spectral_fnet__grouped_kv_mqa__prompt'
def header():
    ref = open(f'header.txt').read().split('\n')
    return [l for l in ref if l.startswith(';') and '@launch' not in l and 'Override' not in l and 'grid=ceil' not in l]
def build(parts, path):
    out = header()
    for nm, t, d, g, b, lds in parts:
        out.append(f'; @launch kernel={nm} grid=({g},1,1) block=({b},1,1) lds={lds}')
    out.append('.amdgcn_target "amdgcn-amd-amdhsa--gfx950"\n.text')
    seen = set()
    for nm, t, d, g, b, lds in parts:
        if nm in seen: continue
        seen.add(nm); out.append(t)
    out.append('.section .rodata,"a"')
    seen = set()
    for nm, t, d, g, b, lds in parts:
        if nm in seen: continue
        seen.add(nm); out.append(d)
    open(path, 'w').write('\n'.join(out))
def std_parts():
    t1, d1, _ = k1.gen_k1(); t2, d2, _ = k2.gen_k2(gpos='split', dpos='prepv1'); t3, d3, _ = k3.gen_k3()
    return [('prep_kernel', t1, d1, 256, 512, 153600), ('attn_kernel', t2, d2, 256, 512, 163840), ('outp_kernel', t3, d3, 256, 512, 102400)]
if __name__ == '__main__':
    build(std_parts(), f'cdna_kernels/{NAME}.s')
```

```python
from build import *
from asmlib import *
p = std_parts()
e = ('empty_kernel', kernel_head('empty_kernel') + '  s_endpgm\n', kernel_desc('empty_kernel', 8), 256, 64, 0)
import os
os.makedirs('var', exist_ok=True)
build(p + [e], 'a_end_empty.s')
build([e] + p, 'b_start_empty.s')
build([p[0], p[1], p[1], p[2]], 'c_2attn.s')
build([p[0], p[0], p[1], p[2]], 'd_2prep.s')
build([p[0], p[1], p[2], p[2]], 'e_2outp.s')
build(p, 'f_base.s')
```

```python
from asmlib import *
from layout import *
def gen_spin(A, B, mult=20, name='spin_kernel', waves=range(8)):
    a = Asm()
    a(kernel_head(name))
    a(f'''s_cmp_ge_u32 s2, 1
    s_cbranch_scc1 L_spin_end
    s_load_dwordx2 s[4:5], s[0:1], 96
    v_lshlrev_b32 v1, 8, v0
    v_mov_b32 v2, 0
    v_mov_b32 v3, {'-1' if A[2]=='min' else '0'}
    v_mov_b32 v4, {'-1' if B[2]=='min' else '0'}
    ds_write_b32 v2, v3
    ds_write_b32 v2, v4 offset:4
    s_waitcnt lgkmcnt(0)''')
    srd(a, 8, 4, 0x80000, WS_DIAG)
    a('s_barrier')
    for n, (k, st, op) in enumerate((A, B)):
        a(f's_mov_b32 s12, {k*0x10000}')
        for w in waves:
            a(f'buffer_load_dword v{10+8*n+w}, v1, s[8:11], s12 offen offset:{w*32+st*4}')
    a('s_waitcnt vmcnt(0)')
    for n, (k, st, op) in enumerate((A, B)):
        for w in waves:
            a(f'ds_{op}_u32 v2, v{10+8*n+w} offset:{4*n}')
    a(f'''s_waitcnt lgkmcnt(0)
    s_barrier
    ds_read_b64 v[4:5], v2
    s_waitcnt lgkmcnt(0)
    v_sub_u32 v4, v5, v4
    s_nop 1
    v_readfirstlane_b32 s14, v4
    s_memrealtime s[16:17]
    s_min_u32 s14, s14, 10000
    s_mul_i32 s14, s14, {mult}
    s_waitcnt lgkmcnt(0)
L_spin_loop:
    s_memrealtime s[18:19]
    s_waitcnt lgkmcnt(0)
    s_sub_u32 s20, s18, s16
    s_cmp_lt_u32 s20, s14
    s_cbranch_scc1 L_spin_loop
L_spin_end:
    s_endpgm''')
    return (name, a.text(), kernel_desc(name, 32), 1, 256, 64)
```

```python
from build import *
from spin import *
import os, sys
def parts():
    t1, d1, _ = k1.gen_k1(diag='rt'); t2, d2, _ = k2.gen_k2(gpos='split', dpos='prepv1', diag='rt'); t3, d3, _ = k3.gen_k3(diag='rt')
    return [('prep_kernel', t1, d1, 256, 512, 153600), ('attn_kernel', t2, d2, 256, 512, 163840), ('outp_kernel', t3, d3, 256, 512, 102400)]
p = parts()
build(p + [gen_spin((0,0,'min'),(0,0,'min'))], 's0.s')
build(p + [gen_spin((0,0,'min'),(0,4,'max'))], 's1.s')
build(p + [gen_spin((0,0,'min'),(1,0,'min'))], 's2.s')
build(p + [gen_spin((0,0,'min'),(1,4,'max'))], 's3.s')
build(p + [gen_spin((0,0,'min'),(2,0,'min'))], 's4.s')
build(p + [gen_spin((0,0,'min'),(2,4,'max'))], 's5.s')
```

```python
from variants2 import *
build(p + [gen_spin((1,2,'min'),(1,3,'max'))], 's1.s')
build(p + [gen_spin((1,0,'min'),(1,1,'max'))], 's2.s')
build(p + [gen_spin((1,0,'min'),(1,2,'max'))], 's3.s')
build(p + [gen_spin((1,0,'min'),(1,0,'max'))], 's4.s')
x = list(gen_spin((0,0,'min'),(0,0,'min')))
x[1] = x[1].replace('s_min_u32 s14, s14, 10000', 's_mov_b32 s14, 1000')
build(p + [tuple(x)], 's5.s')
build(p + [gen_spin((0,0,'min'),(0,0,'max'))], 's0.s')
```

```python
from asmlib import *
from layout import *

def gen_k2(name='attn_kernel', diag=False, prio=True, gpos='postqk2', sched=(3,3,5,5), dpos='postpv1', drop=(), moff=M_OFF, ones='all'):
    a = Asm()
    R = Regs(1)
    vLane = R.get(); vT0 = R.get(); vT1 = R.get(); vIdx = R.get(); vDma = R.get()
    aK = [R.get() for _ in range(3)]; aV = [R.get() for _ in range(3)]
    vOoff = R.get(); vOoffB = R.get()
    Qa = R.get(4, 4); Qlo = R.get(2); Qhi = R.get(2)
    Kb = [R.get(4, 4) for _ in range(2)]
    Ka = [[R.get(4, 4) for _ in range(2)] for _ in range(2)]
    Vb = [[R.get(4, 4) for _ in range(4)] for _ in range(2)]
    S = [R.get(16, 4) for _ in range(2)]
    P = R.get(16, 4); O = R.get(16, 4); Mn = R.get(16, 4)
    nv = R.hi
    sW = 3; sWS = 4; sKV = 8; sQ = 12; sO = 16; sDma = 20; sT = 21; sVm = 22; sLo = 24; sCnt = 26; sD = 28
    sTs = 40
    def stamp(i):
        if diag: a(f"{'s_memrealtime' if diag == 'rt' else 's_memtime'} {s(sTs+2*i,2)}")
    a(kernel_head(name))
    a(f'''s_cmp_ge_u32 s2, 256
    s_cbranch_scc1 L_{name}_end''')
    stamp(0)
    a(f'''s_load_dwordx2 {s(sWS,2)}, s[0:1], 96
    v_lshrrev_b32 {v(vT0)}, 6, v0
    v_and_b32 {v(vLane)}, 63, v0
    v_readfirstlane_b32 {s(sW)}, {v(vT0)}
    v_lshlrev_b32 {v(vDma)}, 4, {v(vLane)}
    s_and_b32 s30, s2, 7
    s_lshr_b32 s31, s2, 3
    s_lshl_b32 s30, s30, 3
    s_lshr_b32 s32, s31, 2
    s_add_u32 s30, s30, s32
    s_and_b32 s31, s31, 3
    s_lshl_b32 s31, s31, 3
    s_add_u32 s31, s31, {s(sW)}        ; head
    s_lshl_b32 s32, s30, 5
    s_add_u32 s32, s32, s31
    s_mul_i32 s32, s32, 1280
    s_lshl_b32 {s(sDma)}, {s(sW)}, 10
    s_mov_b32 m0, {s(sDma)}
    v_and_b32 {v(vT0)}, 31, {v(vLane)}
    v_lshlrev_b32 {v(vT1)}, 3, {v(vT0)}
    s_waitcnt lgkmcnt(0)''')
    srd(a, sKV, sWS, KV_BYTES, WS_KV)
    srd(a, sQ, sWS, Q_BYTES, WS_Q)
    ndma = [0]
    def dma():
        r = ndma[0]; ndma[0] += 1
        a(f'buffer_load_dwordx4 {v(vDma)}, {s(sKV,4)}, {s(sDma)} offen lds')
        if r < 19:
            a(f's_add_u32 {s(sDma)}, {s(sDma)}, 8192')
            a(f's_mov_b32 m0, {s(sDma)}')
    dma()
    a(f'''buffer_load_dwordx4 {v(Qa,4)}, {v(vDma)}, {s(sQ,4)}, s32 offen
    buffer_load_dwordx2 {v(Qhi,2)}, {v(vT1)}, {s(sQ,4)}, s32 offen offset:1024''')
    dma(); a('s_nop 0'); dma(); a('s_nop 0'); dma()
    srd(a, sO, sWS, O_BYTES, WS_O)
    a(f'''s_mul_i32 s33, s30, 40960
    s_lshr_b32 s34, s31, 2
    s_mul_i32 s34, s34, 5120
    s_add_u32 s33, s33, s34
    s_and_b32 s34, s31, 3
    s_lshl_b32 s35, s34, 10
    s_add_u32 s35, s35, s33
    v_add_u32 {v(vOoff)}, s35, {v(vDma)}
    s_lshr_b32 s35, s34, 1
    s_lshl_b32 s35, s35, 9
    s_and_b32 s34, s34, 1
    s_lshl_b32 s34, s34, 3
    s_add_u32 s35, s35, s34
    s_add_u32 s35, s35, s33
    s_add_u32 s35, s35, 4096
    v_add_u32 {v(vOoffB)}, s35, {v(vDma)}''')
    a(f'''v_lshrrev_b32 {v(vT1)}, 5, {v(vLane)}
    v_mul_u32_u24 {v(vT1)}, 20, {v(vT1)}
    v_add_u32 {v(vT1)}, {v(vT1)}, {v(vT0)}
    v_lshlrev_b32 {v(vT1)}, 4, {v(vT1)}''')
    for b in range(3):
        a(f'v_add_u32 {v(aK[b])}, {b*61440}, {v(vDma)}')
        a(f'v_add_u32 {v(aV[b])}, {b*61440+5120}, {v(vT1)}')
    a(f'''s_mov_b32 {s(sVm)}, 0x000fffff
    s_mov_b32 {s(sVm+1)}, 0x000fffff
    s_mov_b32 {s(sLo)}, -1
    s_mov_b32 {s(sLo+1)}, 0
    v_mov_b32 {v(vIdx)}, 0xdddddddd''')
    if ones == 'all':
        a(f'v_mov_b32 {v(vT1)}, 0x3f803f80')
    else:
        a(f'''v_and_b32 {v(vT1)}, 0x1b, {v(vLane)}
        v_cmp_eq_u32 vcc, 24, {v(vT1)}
        v_mov_b32 {v(vT1)}, 0x3f803f80
        s_nop 0
        v_cndmask_b32 {v(vT1)}, 0, {v(vT1)}, vcc''')
    for p in range(2):
        for f in range(4):
            for i in range(4): a(f'v_mov_b32 {v(Vb[p][f]+i)}, {v(vT1)}')
    for i in range(16): a(f'v_mov_b32 {v(O+i)}, 0')

    def rdKa(dst, t):
        u, tt = divmod(t, 4); b, uu = divmod(u, 6)
        a(f'ds_read_b128 {v(dst,4)}, {v(aK[b])} offset:{uu*10240 + tt*1024}')
    def rdKb(u):
        b, uu = divmod(u, 6)
        a(f'ds_read_b128 {v(Kb[u%2],4)}, {v(aK[b])} offset:{uu*10240 + 4096}')
    def rdV(dst, t, f):
        u, tt = divmod(t, 4); b, uu = divmod(u, 6)
        a(f'ds_read_b128 {v(dst,4)}, {v(aV[b])} offset:{uu*10240 + (tt*2+f)*640}')
    def group(g, part='all'):
        p = g % 2
        if 'lds' in drop and g > 1: return
        if part in ('all', 'k'):
            if 2*g+1 < 64: rdKa(Ka[p][0], 2*g+1)
            if 2*g+2 < 64: rdKa(Ka[p][1], 2*g+2)
            if (2*g+2) % 4 == 0 and 2*g+2 < 64: rdKb((2*g+2)//4)
        if part in ('all', 'v'):
            a(f's_mov_b64 exec, {s(sVm,2)}')
            if g > 0: rdV(Vb[p][0], 2*g-1, 1)
            if g < 32:
                rdV(Vb[p][1], 2*g, 0); rdV(Vb[p][2], 2*g, 1); rdV(Vb[p][3], 2*g+1, 0)
            a('s_mov_b64 exec, -1')
    def qk1(t, ka, c):
        if 'qk1' in drop and t > 1: return
        if 'c0' in drop: c = '0'
        a(f'v_mfma_f32_32x32x16_bf16 {v(S[t%2],16)}, {v(ka,4)}, {v(Qa,4)}, {c}')
    def qk2(t):
        if 'qk2' in drop and t > 1: return
        kb = Kb[(t//4)%2] + 2*((t%4)//2)
        q = Qlo if t % 2 == 0 else Qhi
        a(f'v_mfma_f32_32x32x8bf16_1k {v(S[t%2],16)}, {v(kb,2)}, {v(q,2)}, {v(S[t%2],16)}')
    def pv(vf, half):
        if 'pv' in drop: return
        a(f'v_smfmac_f32_32x32x32_bf16 {v(O,16)}, {v(vf,4)}, {v(P+8*half,8)}, {v(vIdx)}')

    a('s_waitcnt vmcnt(3)')
    a('s_barrier')
    stamp(1)
    rdKa(Ka[1][1], 0); rdKb(0)
    group(0)
    a(f'''v_cndmask_b32 {v(Qlo)}, 0, {v(Qhi)}, {s(sLo,2)}
    v_cndmask_b32 {v(Qlo+1)}, 0, {v(Qhi+1)}, {s(sLo,2)}
    v_cndmask_b32 {v(Qhi)}, {v(Qhi)}, 0, {s(sLo,2)}
    v_cndmask_b32 {v(Qhi+1)}, {v(Qhi+1)}, 0, {s(sLo,2)}
    s_waitcnt lgkmcnt(5)''')
    qk1(0, Ka[1][1], '0'); qk2(0)
    dma(); a('s_nop 0'); dma()
    a('s_nop 7')
    s0 = S[0]
    a(f'v_max3_f32 {v(vT0)}, {v(s0)}, {v(s0+1)}, {v(s0+2)}')
    a(f'v_max3_f32 {v(vT1)}, {v(s0+3)}, {v(s0+4)}, {v(s0+5)}')
    for i in range(6, 14, 4):
        a(f'v_max3_f32 {v(vT0)}, {v(vT0)}, {v(s0+i)}, {v(s0+i+1)}')
        a(f'v_max3_f32 {v(vT1)}, {v(vT1)}, {v(s0+i+2)}, {v(s0+i+3)}')
    a(f'v_max3_f32 {v(vT0)}, {v(vT0)}, {v(s0+14)}, {v(s0+15)}')
    a(f'v_max_f32 {v(vT0)}, {v(vT0)}, {v(vT1)}')
    a(f'''v_mov_b32 {v(vT1)}, {v(vT0)}
    s_nop 1
    v_permlane32_swap_b32 {v(vT0)}, {v(vT1)}
    s_nop 1
    v_max_f32 {v(vT0)}, {v(vT0)}, {v(vT1)}
    v_sub_f32 {v(Mn)}, {-moff}, {v(vT0)}''')
    for i in range(1, 16): a(f'v_mov_b32 {v(Mn+i)}, {v(Mn)}')
    for i in range(0, 16, 2):
        a(f'v_pk_add_f32 {v(s0+i,2)}, {v(s0+i,2)}, {v(Mn,2)}')
    stamp(2)
    if diag == 'rt': a(f's_memtime {s(sTs+10,2)}')
    def need_bytes(g):
        t = min(2*g+2, 63); u, tt = divmod(t, 4)
        hi = u*10240 + 5120
        t = min(2*g+1, 63); u, tt = divmod(t, 4)
        return max(hi, u*10240 + 5120 + (tt*2+2)*640)
    synced = [8192]
    sync_plan = {1: 3, 5: 11, 17: 19}
    prio_plan = {}
    if prio:
        prio_plan = {0: 3, 4: 2, 6: 1, 7: 0, 8: 3, 22: 2, 28: 1, 31: 0, 32: 3, 52: 2, 59: 1, 63: 0}
    def body(t):
        g, o = divmod(t, 2); p = g % 2
        cur = S[t%2]
        ei = [0]
        def e(n):
            for _ in range(n):
                if not ('exp' in drop and t > 0): a(f'v_exp_f32 {v(P+ei[0])}, {v(cur+ei[0])}')
                ei[0] += 1
        def grp(part):
            gn = g+1
            if part in ('all', 'k'):
                if gn in sync_plan:
                    r = sync_plan[gn]
                    assert ndma[0] > r
                    a(f's_waitcnt vmcnt({ndma[0]-1-r})')
                    a('s_barrier')
                    synced[0] = (r+1)*8192
                assert need_bytes(gn) <= synced[0], (gn, need_bytes(gn), synced[0])
            group(gn, part)
        if t in prio_plan: a(f's_setprio {prio_plan[t]}')
        if o == 0:
            a('s_waitcnt lgkmcnt(0)')
        if t+1 < 64: qk1(t+1, Ka[p][o], v(Mn,16))
        e(sched[0])
        if t > 0: pv(Vb[p][2*o], 1)
        e(sched[1])
        if t+1 < 64: qk2(t+1)
        if o == 0 and gpos == 'postqk2': grp('all')
        e(sched[2])
        if o == 0 and gpos == 'prepv1': grp('all')
        if o == 0 and gpos == 'split': grp('k')
        if ndma[0] < 20 and dpos == 'prepv1': dma()
        pv(Vb[p][2*o+1], 0)
        if ndma[0] < 20 and dpos == 'postpv1': dma()
        e(sched[3])
        if o == 0 and gpos == 'end': grp('all')
        if o == 0 and gpos == 'split': grp('v')
        if t == 62: a('s_nop 1')
    for t in range(64): body(t)
    a('s_waitcnt lgkmcnt(0)')
    a('s_nop 0')
    pv(Vb[0][0], 1)
    stamp(3)
    if diag == 'rt': a(f's_memtime {s(sTs+12,2)}')
    a('s_nop 15')
    a(f'v_mul_f32 {v(vT0)}, 0, {v(O)}')
    for i in range(1, 13): a(f'v_fmac_f32 {v(vT0)}, 0, {v(O+i)}')
    a(f'''v_cmp_u_f32 vcc, {v(vT0)}, {v(vT0)}
    {'s_nop 0' if drop else f's_cbranch_vccnz L_{name}_slow'}
L_{name}_fin:
    v_rcp_f32 {v(vT0)}, {v(O+12)}
    s_nop 0''')
    for i in range(12): a(f'v_mul_f32 {v(O+i)}, {v(O+i)}, {v(vT0)}')
    for i in range(6): a(f'v_cvt_pk_bf16_f32 {v(P+i)}, {v(O+2*i)}, {v(O+2*i+1)}')
    a(f'''buffer_store_dwordx4 {v(P,4)}, {v(vOoff)}, {s(sO,4)}, 0 offen
    s_mov_b64 exec, {s(sLo,2)}
    buffer_store_dwordx2 {v(P+4,2)}, {v(vOoffB)}, {s(sO,4)}, 0 offen''')
    if diag:
        a('s_waitcnt vmcnt(0)')
        stamp(4)
        srd(a, sD, sWS, 0x10000, WS_DIAG + (0x10000*1 if diag == 'rt' else 0))
        a(f'''s_waitcnt lgkmcnt(0)
        s_lshl_b32 s36, s2, 3
        s_add_u32 s36, s36, {s(sW)}
        s_lshl_b32 s36, s36, 5
        v_mov_b32 {v(vT0)}, s36
        s_mov_b64 exec, 1''')
        for i in range(7): a(f'v_mov_b32 {v(S[0]+i)}, {s(sTs+2*i)}')
        a(f'''buffer_store_dwordx4 {v(S[0],4)}, {v(vT0)}, {s(sD,4)}, 0 offen
        buffer_store_dwordx4 {v(S[0]+4,4)}, {v(vT0)}, {s(sD,4)}, 0 offen offset:16''')
    a(f'L_{name}_end:')
    a('s_endpgm')
    a(f'L_{name}_slow:')
    a(f'v_mov_b32 {v(Mn)}, 0xff800000')
    for ps in range(2):
        a(f'''v_mov_b32 {v(aK[1])}, {v(aK[0])}
        v_mov_b32 {v(aV[1])}, {v(aV[0])}
        s_mov_b32 {s(sCnt)}, 16
L_{name}_slow{ps}:
        ds_read_b128 {v(Kb[0],4)}, {v(aK[1])} offset:4096''')
        for tt in range(4):
            a(f'ds_read_b128 {v(Ka[0][0],4)}, {v(aK[1])} offset:{tt*1024}')
            if ps == 1:
                a(f'''s_mov_b64 exec, {s(sVm,2)}
                ds_read_b128 {v(Vb[0][0],4)}, {v(aV[1])} offset:{tt*1280}
                ds_read_b128 {v(Vb[0][1],4)}, {v(aV[1])} offset:{tt*1280+640}
                s_mov_b64 exec, -1''')
            a('s_waitcnt lgkmcnt(0)')
            a(f'v_mfma_f32_32x32x16_bf16 {v(s0,16)}, {v(Ka[0][0],4)}, {v(Qa,4)}, 0')
            a(f'v_mfma_f32_32x32x8bf16_1k {v(s0,16)}, {v(Kb[0]+2*(tt//2),2)}, {v(Qlo if tt%2==0 else Qhi,2)}, {v(s0,16)}')
            a('s_nop 15')
            if ps == 0:
                for i in range(0, 16, 2): a(f'v_max3_f32 {v(Mn)}, {v(Mn)}, {v(s0+i)}, {v(s0+i+1)}')
            else:
                for i in range(16): a(f'v_sub_f32 {v(s0+i)}, {v(s0+i)}, {v(Mn)}')
                for i in range(16): a(f'v_exp_f32 {v(P+i)}, {v(s0+i)}')
                a('s_nop 1')
                pv(Vb[0][0], 0); pv(Vb[0][1], 1)
                a('s_nop 7')
        a(f'''v_add_u32 {v(aK[1])}, 10240, {v(aK[1])}
        v_add_u32 {v(aV[1])}, 10240, {v(aV[1])}
        s_sub_u32 {s(sCnt)}, {s(sCnt)}, 1
        s_cmp_lg_u32 {s(sCnt)}, 0
        s_cbranch_scc1 L_{name}_slow{ps}''')
        if ps == 0:
            a(f'''v_mov_b32 {v(vT1)}, {v(Mn)}
            s_nop 1
            v_permlane32_swap_b32 {v(Mn)}, {v(vT1)}
            s_nop 1
            v_max_f32 {v(Mn)}, {v(Mn)}, {v(vT1)}''')
            for i in range(16): a(f'v_mov_b32 {v(O+i)}, 0')
    a(f'''s_nop 15
    s_branch L_{name}_fin''')
    return a.text(), kernel_desc(name, nv), nv

if __name__ == '__main__':
    t, d, nv = gen_k2()
    print(t); print(d); print('; nv', nv)
```

```python
from build import *
from asmlib import *
def gridbar(a, n):
    a(f'''L_bar{n}:
    s_mov_b64 exec, -1
    s_setprio 0
    s_load_dwordx2 s[8:9], s[0:1], 88
    s_waitcnt vmcnt(0) lgkmcnt(0)
    s_barrier
    v_lshrrev_b32 v1, 6, v0
    s_mov_b32 s10, 256
    v_readfirstlane_b32 s3, v1
    s_mov_b32 s11, 0x20000
    s_cmp_lg_u32 s3, 0
    s_cbranch_scc1 L_barw{n}
    buffer_wbl2 sc1
    s_waitcnt vmcnt(0)
    v_mov_b32 v2, {n*128}
    v_mov_b32 v3, 1
    s_mov_b64 exec, 1
    buffer_atomic_add v3, v2, s[8:11], 0 offen sc1
    s_mov_b32 s13, 200000
L_barp{n}:
    s_sleep 4
    s_sub_u32 s13, s13, 1
    s_cmp_eq_u32 s13, 0
    s_cbranch_scc1 L_barx{n}
    buffer_load_dword v4, v2, s[8:11], 0 offen sc1
    s_waitcnt vmcnt(0)
    v_readfirstlane_b32 s12, v4
    s_cmp_lt_u32 s12, 256
    s_cbranch_scc1 L_barp{n}
L_barx{n}:
    s_mov_b64 exec, -1
    buffer_inv sc1
    s_waitcnt vmcnt(0)
L_barw{n}:
    s_barrier''')
def body(t, name):
    i = t.index(name + ':') + len(name) + 2
    return t[i:]
def fused(diag=False, aslist=False, tail=''):
    t1, d1, _ = k1.gen_k1(diag=diag); t2, d2, _ = k2.gen_k2(gpos='split', dpos='prepv1', diag=diag); t3, d3, _ = k3.gen_k3(diag=diag)
    kn = NAME + '_kernel'
    a = Asm()
    a(kernel_head(kn))
    a('s_cmp_ge_u32 s2, 256\ns_cbranch_scc0 L_go\ns_endpgm\nL_go:')
    txt = a.text() + body(t1, 'prep_kernel').replace('s_endpgm', 's_branch L_bar0')
    a = Asm(); gridbar(a, 0); txt += a.text() + body(t2, 'attn_kernel').replace('s_endpgm', 's_branch L_bar1')
    a = Asm(); gridbar(a, 1); txt += a.text() + body(t3, 'outp_kernel')
    return (kn, txt, kernel_desc(kn, 164), 256, 512, 163840)
def single(part, path):
    nm, t, d, g, b, lds = part
    out = header() + [f'; @launch grid=({g},1,1) block=({b},1,1) lds={lds}', '.amdgcn_target "amdgcn-amd-amdhsa--gfx950"\n.text', t, '.section .rodata,"a"', d]
    open(path, 'w').write('\n'.join(out))
if __name__ == '__main__':
    from spin import *
    single(fused(), 'u0.s')
    build([fused()], 'u1.s')
    f = fused(diag='rt')
    build([f, gen_spin((0,0,'min'),(0,0,'min'))], 'u2.s')
    build([f, gen_spin((0,0,'min'),(2,4,'max'))], 'u3.s')
    build([f, gen_spin((0,0,'min'),(1,0,'min'))], 'u4.s')
    build([f, gen_spin((0,0,'min'),(2,0,'min'))], 'u5.s')
    import chk
    p = fused(); chk.check(p[1], p[2], 'fused')
```

```python
from variants2 import *
Ld = range(4,8); Cp = range(0,4)
build(p + [gen_spin((0,0,'min'),(0,1,'max'), waves=Ld)], 's0.s')
build(p + [gen_spin((0,0,'min'),(0,2,'max'), waves=Ld)], 's1.s')
build(p + [gen_spin((0,0,'min'),(0,2,'max'), waves=Cp)], 's2.s')
build(p + [gen_spin((2,0,'min'),(2,1,'max'), waves=Cp)], 's3.s')
build(p + [gen_spin((2,0,'min'),(2,2,'max'), waves=Cp)], 's4.s')
build(p + [gen_spin((2,0,'min'),(2,4,'max'), waves=Cp)], 's5.s')
```

```python
from asmlib import *
from layout import *
import struct
def fhex(x): return hex(struct.unpack('<I', struct.pack('<f', x))[0])

SLOT = 30720; XOFF = 0; WOFF = 16384; KVOFF = 28672
OOB = 0x40000000

def gen_k1(name='prep_kernel', diag=False, fused=False, nt='', early=False, xrole=False):
    a = Asm()
    sW=3; sJ=4; sRB=5; sCG=6; sRole=7
    sX=8; sWt=12; sKVw=16; sWS=20; sOut=24; sOut2=28; sD=32
    sM0=36; sXo=37; sWo=38; sKo=39; sT0=40; sT1=41; sT2=42; sT3=43; sLo=44; sP=46
    sTs=70
    def stamp(i):
        if diag: a(f"{'s_memrealtime' if diag == 'rt' else 's_memtime'} {s(sTs+2*i,2)}")
    def diag_out():
        if not diag: return
        a('s_waitcnt vmcnt(0)')
        stamp(4)
        srd(a, sD, sWS, 0x10000, WS_DIAG + (0x10000*0 if diag == 'rt' else 0))
        a(f'''s_waitcnt lgkmcnt(0)
        s_lshl_b32 {s(sT0)}, s2, 3
        s_add_u32 {s(sT0)}, {s(sT0)}, {s(sW)}
        s_lshl_b32 {s(sT0)}, {s(sT0)}, 5
        s_mov_b64 exec, 1
        v_mov_b32 v1, {s(sT0)}''')
        for i in range(5): a(f'v_mov_b32 {v(4+i)}, {s(sTs+2*i)}')
        a(f'''buffer_store_dwordx4 v[4:7], v1, {s(sD,4)}, 0 offen
        buffer_store_dwordx4 v[8:11], v1, {s(sD,4)}, 0 offen offset:16''')
    L = lambda x: f'L_{name}_{x}'
    vLane=1; vT0=2; vT1=3; vT2=4; vT3=5
    a(kernel_head(name))
    a(f'''s_cmp_ge_u32 s2, 256
    s_cbranch_scc1 {L('end')}''')
    stamp(0)
    a(f'''s_load_dwordx2 s[46:47], s[0:1], 0        ; A_x
    s_load_dwordx4 s[48:51], s[0:1], 24
    s_load_dwordx8 s[52:59], s[0:1], 40
    s_load_dwordx2 {s(sWS,2)}, s[0:1], 96
    v_lshrrev_b32 {v(vT0)}, 6, v0
    v_and_b32 {v(vLane)}, 63, v0
    v_readfirstlane_b32 {s(sW)}, {v(vT0)}
    s_and_b32 {s(sJ)}, s2, 7
    s_lshr_b32 {s(sT0)}, s2, 3
    s_and_b32 {s(sRole)}, {s(sT0)}, 1
    s_lshr_b32 {s(sT0)}, {s(sT0)}, 1
    s_and_b32 {s(sCG)}, {s(sT0)}, 7
    s_lshr_b32 {s(sRB)}, {s(sT0)}, 3''')
    if xrole:
        a(f'''s_and_b32 {s(sT1)}, {s(sJ)}, 3
        s_lshl_b32 {s(sT1)}, {s(sT1)}, 1
        s_add_u32 {s(sT1)}, {s(sT1)}, {s(sRole)}
        s_lshr_b32 {s(sRole)}, {s(sJ)}, 2
        s_mov_b32 {s(sJ)}, {s(sT1)}''')
    a(f'''s_mov_b32 {s(sLo)}, -1
    s_mov_b32 {s(sLo+1)}, 0
    s_cmp_ge_u32 {s(sW)}, 4
    s_cbranch_scc0 {L('compute')}''')
    vXa = [8, 9]; vWa = [10, 11, 12]; vKa = 13
    sLW = sT3
    a(f'''s_sub_u32 {s(sLW)}, {s(sW)}, 4
    v_lshrrev_b32 {v(vT0)}, 3, {v(vLane)}
    v_and_b32 {v(vT1)}, 7, {v(vLane)}              ; 16B slot
    v_lshrrev_b32 {v(vT2)}, 4, {v(vLane)}
    v_xor_b32 {v(vT1)}, {v(vT1)}, {v(vT2)}
    v_xor_b32 {v(vT2)}, 4, {v(vT1)}
    v_lshlrev_b32 {v(vT1)}, 4, {v(vT1)}
    v_lshlrev_b32 {v(vT2)}, 4, {v(vT2)}
    s_cmp_eq_u32 {s(sRole)}, 0
    s_cbranch_scc0 {L('ldF')}''')
    def loader(role):
        xs = 1280 if role == 'Q' else 81920
        n = 8 if role == 'Q' else 7
        a(f'''s_mov_b32 {s(sT0)}, {xs}
        v_mad_u32_u24 {v(vXa[0])}, {v(vT0)}, {s(sT0)}, {v(vT1)}
        v_mad_u32_u24 {v(vXa[1])}, {v(vT0)}, {s(sT0)}, {v(vT2)}''')
        if role == 'Q':
            a(f'''s_lshl_b32 {s(sT0)}, {s(sJ)}, 3
            s_lshl_b32 {s(sT1)}, {s(sRB)}, 2
            s_add_u32 {s(sT0)}, {s(sT0)}, {s(sT1)}
            s_add_u32 {s(sT0)}, {s(sT0)}, {s(sLW)}
            s_mul_i32 {s(sXo)}, {s(sT0)}, {32*1280}
            s_mul_i32 {s(sWo)}, {s(sCG)}, 160
            s_mul_i32 {s(sT0)}, {s(sLW)}, 192
            s_mov_b32 {s(sT1)}, 5462''')
            for q in range(3):
                a(f'''v_add_u32 {v(vT0)}, {s(sT0)}, {v(vLane)}
                v_add_u32 {v(vT0)}, {64*q}, {v(vT0)}            ; piece p
                v_mul_u32_u24 {v(vT1)}, {s(sT1)}, {v(vT0)}
                v_lshrrev_b32 {v(vT1)}, 16, {v(vT1)}            ; k row = p/12
                v_mul_u32_u24 {v(vT2)}, 12, {v(vT1)}
                v_sub_u32 {v(vT0)}, {v(vT0)}, {v(vT2)}          ; pc = p%12
                v_lshrrev_b32 {v(vT2)}, 1, {v(vT0)}
                v_mul_u32_u24 {v(vT2)}, 40, {v(vT2)}
                v_and_b32 {v(vT3)}, 1, {v(vT0)}
                v_lshl_add_u32 {v(vT2)}, {v(vT3)}, 4, {v(vT2)}  ; pc<8: 40*(pc/2)+16*(pc%2)
                v_mul_u32_u24 {v(vT3)}, 40, {v(vT0)}
                v_subrev_u32 {v(vT3)}, {8*40-32}, {v(vT3)}
                v_cmp_gt_u32 vcc, 8, {v(vT0)}
                v_mul_u32_u24 {v(vT1)}, 1280, {v(vT1)}
                s_nop 0
                v_cndmask_b32 {v(vT2)}, {v(vT3)}, {v(vT2)}, vcc
                v_add_u32 {v(vWa[q])}, {v(vT1)}, {v(vT2)}''')
            a(f'''s_lshl_b32 {s(sT0)}, {s(sLW)}, 4
            v_lshrrev_b32 {v(vT0)}, 1, {v(vLane)}
            v_add_u32 {v(vT0)}, {s(sT0)}, {v(vT0)}
            v_mul_u32_u24 {v(vT0)}, 40, {v(vT0)}
            v_and_b32 {v(vT1)}, 1, {v(vLane)}
            v_lshl_add_u32 {v(vKa)}, {v(vT1)}, 4, {v(vT0)}
            s_and_b32 {s(sKo)}, {s(sCG)}, 1
            s_lshl_b32 {s(sKo)}, {s(sKo)}, 5
            s_cmp_ge_u32 {s(sCG)}, 4
            s_cselect_b32 {s(sT0)}, {hex(OOB)}, 0
            v_add_u32 {v(vKa)}, {s(sT0)}, {v(vKa)}
            s_waitcnt lgkmcnt(0)''')
            srd(a, sX, 52, X_BYTES); srd(a, sWt, 54, W_BYTES)
            a(f'''s_cmp_ge_u32 {s(sCG)}, 2
            s_cselect_b32 {s(sKVw)}, s58, s56
            s_cselect_b32 {s(sKVw+1)}, s59, s57
            s_mov_b32 {s(sKVw+2)}, {WKV_BYTES}
            s_mov_b32 {s(sKVw+3)}, 0x20000''')
        else:
            a(f'''s_lshl_b32 {s(sT0)}, {s(sJ)}, 3
            s_lshl_b32 {s(sT1)}, {s(sRB)}, 2
            s_add_u32 {s(sT0)}, {s(sT0)}, {s(sT1)}
            s_add_u32 {s(sT0)}, {s(sT0)}, {s(sLW)}
            s_mul_i32 {s(sXo)}, {s(sT0)}, 1280
            s_and_b32 {s(sT0)}, {s(sCG)}, 3
            s_mul_i32 {s(sWo)}, {s(sT0)}, {80*1280}
            s_mul_i32 {s(sT0)}, {s(sLW)}, 24
            s_mov_b32 {s(sT1)}, 1280''')
            for q in range(3):
                a(f'''v_add_u32 {v(vT3)}, {s(sT0)}, {v(vT0)}
                v_add_u32 {v(vT3)}, {8*q}, {v(vT3)}
                v_and_b32 {v(vWa[q])}, 8, {v(vT3)}
                v_lshlrev_b32 {v(vWa[q])}, 3, {v(vWa[q])}
                v_xor_b32 {v(vWa[q])}, {v(vWa[q])}, {v(vT1)}
                v_mad_u32_u24 {v(vWa[q])}, {v(vT3)}, {s(sT1)}, {v(vWa[q])}
                v_cmp_lt_u32 vcc, 80, {v(vT3)}
                v_mov_b32 {v(vT3)}, {hex(OOB)}
                s_nop 0
                v_cndmask_b32 {v(vWa[q])}, {v(vWa[q])}, {v(vT3)}, vcc''')
            a('s_waitcnt lgkmcnt(0)')
            srd(a, sX, 46, X_BYTES)
            a(f'''s_cmp_ge_u32 {s(sCG)}, 4
            s_cselect_b32 {s(sWt)}, s50, s48
            s_cselect_b32 {s(sWt+1)}, s51, s49
            s_mov_b32 {s(sWt+2)}, {W_BYTES}
            s_mov_b32 {s(sWt+3)}, 0x20000''')
        sBx, sBw, sBk = 60, 61, 62
        a(f'''s_lshl_b32 {s(sBx)}, {s(sLW)}, 12
        s_mul_i32 {s(sBw)}, {s(sLW)}, 3072
        s_add_u32 {s(sBw)}, {s(sBw)}, {WOFF}
        s_lshl_b32 {s(sBk)}, {s(sLW)}, 9
        s_add_u32 {s(sBk)}, {s(sBk)}, {KVOFF}''')
        def chunk(c):
            base = (c % 5) * SLOT
            for i in range(4):
                a(f'''s_add_u32 m0, {s(sBx)}, {base + i*1024}
                s_add_u32 {s(sT0)}, {s(sXo)}, {i*8*xs + c*128}
                buffer_load_dwordx4 {v(vXa[i%2])}, {s(sX,4)}, {s(sT0)} offen {nt} lds''')
            wstep = 64*1280 if role == 'Q' else 128
            for q in range(3):
                a(f'''s_add_u32 m0, {s(sBw)}, {base + q*1024}
                s_add_u32 {s(sT0)}, {s(sWo)}, {c*wstep}
                buffer_load_dwordx4 {v(vWa[q])}, {s(sWt,4)}, {s(sT0)} offen lds''')
            if role == 'Q':
                a(f'''s_add_u32 m0, {s(sBk)}, {base}
                s_add_u32 {s(sT0)}, {s(sKo)}, {c*64*40}
                s_mov_b64 exec, {s(sLo,2)}
                buffer_load_dwordx4 {v(vKa)}, {s(sKVw,4)}, {s(sT0)} offen lds
                s_mov_b64 exec, -1''')
        stamp(1)
        if not early:
            for c in range(5): chunk(c)
            stamp(2)
            if role == 'F': fmat()
            for c in range(10):
                left = 4 if c == 0 else min(3, 9-c)
                a(f's_waitcnt vmcnt({left*n})')
                a('s_barrier')
                if c >= 1 and c+4 <= 9: chunk(c+4)
        else:
            issued = 0
            for c in range(early): chunk(c); issued += 1
            stamp(2)
            for c in range(10):
                a(f's_waitcnt vmcnt({(issued-1-c)*n})')
                a('s_barrier')
                k = 0
                while issued < 10 and issued <= c+4 and k < (2 if c < 2 else 1):
                    chunk(issued); issued += 1; k += 1
            if role == 'F': fmat()
        stamp(3)
    Fm = [16, 20]
    def fmat():
        vJ, vPh, vS = 24, 25, 26
        a(f'''s_mov_b32 {s(sT1)}, {fhex(-0.25)}
        s_cmp_ge_u32 {s(sCG)}, 4
        s_cselect_b32 {s(sT1)}, {fhex(0.25)}, {s(sT1)}
        v_and_b32 {v(vT0)}, 15, {v(vLane)}
        v_lshrrev_b32 {v(vT1)}, 4, {v(vLane)}
        v_and_b32 {v(vT2)}, 1, {v(vT1)}
        v_lshrrev_b32 {v(vT1)}, 1, {v(vT1)}
        v_lshlrev_b32 {v(vT1)}, 4, {v(vT1)}
        v_lshl_add_u32 {v(vT1)}, {v(vT2)}, 2, {v(vT1)}     ; s1 base = 16(g/2)+4(g%2)
        v_cvt_f32_u32 {v(vS)}, {v(vT1)}
        v_cmp_eq_u32 vcc, 0, {v(vT0)}''')
        for hf in range(2):
            if hf == 0:
                a(f'''v_cvt_f32_u32 {v(vJ)}, {v(vT0)}
                v_mov_b32 {v(vPh)}, 0''')
            else:
                a(f'''v_cndmask_b32 {v(vT1)}, {v(vT0)}, 16, vcc
                v_cvt_f32_u32 {v(vJ)}, {v(vT1)}
                v_mov_b32 {v(vPh)}, {s(sT1)}
                v_cndmask_b32 {v(vPh)}, {v(vPh)}, 0, vcc''')
            a(f'''v_mul_f32 {v(vJ)}, {fhex(1/32)}, {v(vJ)}
            v_fma_f32 {v(vPh)}, {v(vJ)}, {v(vS)}, {v(vPh)}''')
            for i in range(8):
                o = 8*(i//4) + i%4
                a(f'v_fmamk_f32 {v(28+i)}, {v(vJ)}, {fhex(float(o))}, {v(vPh)}')
            for i in range(8): a(f'v_cos_f32 {v(28+i)}, {v(28+i)}')
            a('s_nop 0')
            for i in range(4): a(f'v_cvt_pk_bf16_f32 {v(Fm[hf]+i)}, {v(28+2*i)}, {v(29+2*i)}')
    loader('Q')
    diag_out()
    a('s_endpgm')
    a(f"{L('ldF')}:")
    loader('F')
    a(f"s_branch {L('s1')}")
    a(f"{L('compute')}:")
    acc = [64, 80, 96]
    Xf = [40, 44]; Wf = [[112,116,120],[124,128,132]]
    aX = [8, 9, 10, 11]
    aW = [12, 13, 14, 15]
    a2 = [48+i for i in range(8)]
    for m in range(3):
        for i in range(16): a(f'v_mov_b32 {v(acc[m]+i)}, 0')
    a(f'''v_and_b32 {v(vT0)}, 31, {v(vLane)}
    v_lshrrev_b32 {v(vT1)}, 5, {v(vLane)}            ; h
    v_bfe_u32 {v(vT2)}, {v(vLane)}, 1, 3             ; (row>>1)&7
    v_xor_b32 {v(vT2)}, {v(vT2)}, {v(vT1)}
    v_lshlrev_b32 {v(vT0)}, 7, {v(vT0)}
    s_lshl_b32 {s(sT0)}, {s(sW)}, 12''')
    for ks in range(4):
        a(f'''v_xor_b32 {v(vT3)}, {2*ks}, {v(vT2)}
        v_lshl_add_u32 {v(aW[ks])}, {v(vT3)}, 4, {v(vT0)}
        v_add_u32 {v(aX[ks])}, {s(sT0)}, {v(aW[ks])}''')
    a(f'''s_cmp_eq_u32 {s(sRole)}, 0
    s_cbranch_scc0 {L('cF')}''')
    def mainloop(role):
        addrs = aX + (aW if role == 'F' else [aW[0]] + a2)
        cur = [0]
        def rd(c, ks):
            b = (c*4+ks) % 2
            slot = c % 5
            want = (slot//2)*2*SLOT
            if want != cur[0]:
                for r in addrs:
                    d = want - cur[0]
                    a(f'v_add_u32 {v(r)}, {d}, {v(r)}' if d > 0 else f'v_subrev_u32 {v(r)}, {-d}, {v(r)}')
                cur[0] = want
            o = slot*SLOT - want
            a(f'ds_read_b128 {v(Xf[b],4)}, {v(aX[ks])} offset:{o+XOFF}')
            for m in range(3):
                if role == 'F':
                    a(f'ds_read_b128 {v(Wf[b][m],4)}, {v(aW[ks])} offset:{o+WOFF+m*4096}')
                elif m < 2:
                    for r in range(2):
                        a(f'ds_read_b64_tr_b16 {v(Wf[b][m]+2*r,2)}, {v(aW[0])} offset:{o+WOFF+(16*ks+4*r)*192+64*m}')
                else:
                    for r in range(2):
                        a(f'ds_read_b64_tr_b16 {v(Wf[b][m]+2*r,2)}, {v(a2[2*ks+r])} offset:{o}')
        def mm(c, ks):
            b = (c*4+ks) % 2
            for m in range(3):
                A, B = (Wf[b][m], Xf[b]) if role == 'Q' else (Xf[b], Wf[b][m])
                a(f'v_mfma_f32_32x32x16_bf16 {v(acc[m],16)}, {v(A,4)}, {v(B,4)}, {v(acc[m],16)}')
        nr = 7 if role == 'Q' else 4
        for c in range(10):
            a('s_barrier')
            if c == 0: stamp(1)
            rd(c, 0)
            if c > 0: mm(c-1, 3)
            for ks in range(1, 4):
                rd(c, ks)
                a(f's_waitcnt lgkmcnt({nr})')
                mm(c, ks-1)
            a('s_waitcnt lgkmcnt(0)')
        mm(9, 3)
        stamp(2)
    a(f'''v_bfe_u32 {v(vT0)}, {v(vLane)}, 2, 2             ; r
    v_lshl_add_u32 {v(vT0)}, {v(vT1)}, 3, {v(vT0)}   ; k row = 8h + r
    v_and_b32 {v(vT2)}, 3, {v(vLane)}                ; c
    v_bfe_u32 {v(vT3)}, {v(vLane)}, 4, 1             ; G%2
    v_cmp_eq_u32 vcc, 0, {v(vT3)}
    v_lshl_add_u32 {v(vT3)}, {v(vT3)}, 2, {v(vT2)}   ; q
    v_mul_u32_u24 {v(aW[0])}, 192, {v(vT0)}
    v_lshl_add_u32 {v(aW[1])}, {v(vT2)}, 4, {v(aW[0])}
    v_lshl_add_u32 {v(aW[0])}, {v(vT3)}, 3, {v(aW[0])}
    v_lshlrev_b32 {v(aW[2])}, 5, {v(vT0)}
    v_lshl_add_u32 {v(aW[2])}, {v(vT2)}, 3, {v(aW[2])}''')
    for ks in range(4):
        for r in range(2):
            k = 16*ks + 4*r
            a(f'''v_add_u32 {v(vT0)}, {WOFF + 128 + k*192}, {v(aW[1])}
            v_add_u32 {v(vT2)}, {KVOFF + k*32}, {v(aW[2])}
            v_cndmask_b32 {v(a2[2*ks+r])}, {v(vT2)}, {v(vT0)}, vcc''')
    a('s_waitcnt lgkmcnt(0)')
    if fused:
        srd(a, sD, sWS, FLAG_BYTES, WS_FLAG)
        a(f'''s_lshl_b32 {s(sT0)}, s2, 2
        s_add_u32 {s(sT0)}, {s(sT0)}, {s(sW)}
        s_lshl_b32 {s(sT0)}, {s(sT0)}, 7
        v_lshlrev_b32 v6, 6, {v(vLane)}
        v_mov_b32 v7, 0
        s_mov_b64 exec, 3
        buffer_store_dword v7, v6, {s(sD,4)}, {s(sT0)} offen
        s_mov_b64 exec, -1''')
    srd(a, sOut, sWS, Q_BYTES, WS_Q); srd(a, sOut2, sWS, KV_BYTES, WS_KV)
    mainloop('Q')
    sPT = 60; sQo = 61; sKb = 62
    a(f'''s_lshl_b32 {s(sPT)}, {s(sJ)}, 3
    s_lshl_b32 {s(sT1)}, {s(sRB)}, 2
    s_add_u32 {s(sPT)}, {s(sPT)}, {s(sT1)}
    s_lshr_b32 {s(sKb)}, {s(sPT)}, 2
    s_mul_i32 {s(sKb)}, {s(sKb)}, 10240
    s_add_u32 {s(sPT)}, {s(sPT)}, {s(sW)}
    s_lshl_b32 {s(sQo)}, {s(sPT)}, 3
    s_add_u32 {s(sQo)}, {s(sQo)}, {s(sCG)}
    s_mul_i32 {s(sQo)}, {s(sQo)}, 5120
    s_mov_b32 {s(sT0)}, {fhex(QSCALE)}
    v_lshlrev_b32 {v(vT0)}, 4, {v(vLane)}
    v_and_b32 {v(vT2)}, 31, {v(vLane)}
    v_mul_u32_u24 {v(vT3)}, 1280, {v(vT1)}
    v_lshl_add_u32 {v(vT3)}, {v(vT2)}, 3, {v(vT3)}
    s_nop 3''')
    pk = 16
    for m in range(2):
        for i in range(16): a(f'v_mul_f32 {v(acc[m]+i)}, {s(sT0)}, {v(acc[m]+i)}')
        for i in range(8): a(f'v_cvt_pk_bf16_f32 {v(pk+8*m+i)}, {v(acc[m]+2*i)}, {v(acc[m]+2*i+1)}')
        for hh in range(2):
            a(f'buffer_store_dwordx4 {v(pk+8*m+4*hh,4)}, {v(vT0)}, {s(sOut,4)}, {s(sQo)} offen offset:{(2*m+hh)*1280}')
    for i in range(8): a(f'v_mul_f32 {v(acc[2]+i)}, {s(sT0)}, {v(acc[2]+i)}')
    if fused:
        a(f'''s_cmp_ge_u32 {s(sCG)}, 2
        s_cselect_b32 {s(sT1)}, {fhex(VSCALE)}, 1.0''')
        for i in range(8, 16): a(f'v_mul_f32 {v(acc[2]+i)}, {s(sT1)}, {v(acc[2]+i)}')
    for i in range(8): a(f'v_cvt_pk_bf16_f32 {v(pk+16+i)}, {v(acc[2]+2*i)}, {v(acc[2]+2*i+1)}')
    for j in range(2):
        a(f'buffer_store_dwordx2 {v(pk+16+2*j,2)}, {v(vT3)}, {s(sOut,4)}, {s(sQo)} offen offset:{1024+j*2560}')
    kv = pk+20
    a(f'''s_cmp_ge_u32 {s(sCG)}, 4
    s_cbranch_scc1 {L('qdone')}
    s_cmp_ge_u32 {s(sCG)}, 2
    s_cbranch_scc1 {L('qv')}
    s_cmp_eq_u32 {s(sCG)}, 1
    s_cbranch_scc1 {L('qkb')}
    s_lshl_b32 {s(sT1)}, {s(sW)}, 10
    s_add_u32 {s(sT1)}, {s(sT1)}, {s(sKb)}
    buffer_store_dwordx4 {v(kv,4)}, {v(vT0)}, {s(sOut2,4)}, {s(sT1)} offen
    s_branch {L('qdone')}
{L('qkb')}:
    s_and_b32 {s(sT1)}, {s(sW)}, 1
    s_lshl_b32 {s(sT1)}, {s(sT1)}, 9
    s_lshr_b32 {s(sT2)}, {s(sW)}, 1
    s_lshl_b32 {s(sT2)}, {s(sT2)}, 3
    s_add_u32 {s(sT1)}, {s(sT1)}, {s(sT2)}
    s_add_u32 {s(sT1)}, {s(sT1)}, {s(sKb)}
    s_add_u32 {s(sT1)}, {s(sT1)}, 4096
    s_mov_b64 exec, {s(sLo,2)}
    buffer_store_dwordx2 {v(kv,2)}, {v(vT0)}, {s(sOut2,4)}, {s(sT1)} offen
    s_branch {L('qdone')}
{L('qv')}:
    v_lshrrev_b32 {v(vT3)}, 3, {v(vT2)}
    v_mul_u32_u24 {v(vT3)}, 320, {v(vT3)}
    v_and_b32 {v(vT2)}, 7, {v(vT2)}
    v_lshl_add_u32 {v(vT3)}, {v(vT2)}, 1, {v(vT3)}
    v_lshl_add_u32 {v(vT3)}, {v(vT1)}, 6, {v(vT3)}
    s_mul_i32 {s(sT1)}, {s(sW)}, 1280
    s_add_u32 {s(sT1)}, {s(sT1)}, {s(sKb)}
    s_add_u32 {s(sT1)}, {s(sT1)}, 5120
    s_cmp_eq_u32 {s(sCG)}, 3
    s_cbranch_scc1 {L('qv4')}''')
    for jj in range(2):
        for i in range(4):
            op = 'buffer_store_short' if i % 2 == 0 else 'buffer_store_short_d16_hi'
            a(f'{op} {v(kv+2*jj+i//2)}, {v(vT3)}, {s(sOut2,4)}, {s(sT1)} offen offset:{(8*jj+i)*16}')
    a(f'''s_branch {L('qdone')}
{L('qv4')}:
    s_mov_b64 exec, {s(sLo,2)}''')
    for i in range(4):
        op = 'buffer_store_short' if i % 2 == 0 else 'buffer_store_short_d16_hi'
        a(f'{op} {v(kv+i//2)}, {v(vT3)}, {s(sOut2,4)}, {s(sT1)} offen offset:{(16+i)*16}')
    a(f"{L('qdone')}:")
    stamp(3)
    diag_out()
    a('s_endpgm')
    a(f"{L('cF')}:")
    fmat()
    a('s_waitcnt lgkmcnt(0)')
    if fused:
        srd(a, sD, sWS, FLAG_BYTES, WS_FLAG)
        a(f'''s_lshl_b32 {s(sT0)}, s2, 2
        s_add_u32 {s(sT0)}, {s(sT0)}, {s(sW)}
        s_lshl_b32 {s(sT0)}, {s(sT0)}, 7
        v_lshlrev_b32 v6, 6, {v(vLane)}
        v_mov_b32 v7, 0
        s_mov_b64 exec, 3
        buffer_store_dword v7, v6, {s(sD,4)}, {s(sT0)} offen
        s_mov_b64 exec, -1''')
    mainloop('F')
    a(f'''s_mul_i32 {s(sT0)}, {s(sW)}, 6144
    v_lshl_add_u32 {v(vT0)}, {v(vLane)}, 4, {s(sT0)}
    s_nop 7''')
    a('s_nop 3')
    for m in range(3):
        for i in range(8): a(f'v_cvt_pk_bf16_f32 {v(112+8*m+i)}, {v(acc[m]+2*i)}, {v(acc[m]+2*i+1)}')
        for k2 in range(2): a(f'ds_write_b128 {v(vT0)}, {v(112+8*m+4*k2,4)} offset:{m*2048+k2*1024}')
    a('s_waitcnt lgkmcnt(0)')
    a(f"{L('s1')}:")
    a(f'''s_barrier
    s_cmp_ge_u32 {s(sW)}, 6
    s_cbranch_scc1 {L('fdone')}
    ; lane (col16, g): unit address = tile*2048 + (g/2)*1024 + ((g%2)*32 + 16*(w%2) + col16)*16
    v_and_b32 {v(vT0)}, 15, {v(vLane)}
    v_lshrrev_b32 {v(vT1)}, 4, {v(vLane)}
    v_lshlrev_b32 {v(vT2)}, 9, {v(vT1)}
    v_lshl_add_u32 {v(vT2)}, {v(vT0)}, 4, {v(vT2)}
    s_lshr_b32 {s(sT0)}, {s(sW)}, 1
    s_lshl_b32 {s(sT0)}, {s(sT0)}, 11
    s_and_b32 {s(sT1)}, {s(sW)}, 1
    s_lshl_b32 {s(sT1)}, {s(sT1)}, 8
    s_add_u32 {s(sT0)}, {s(sT0)}, {s(sT1)}
    v_add_u32 {v(vT2)}, {s(sT0)}, {v(vT2)}''')
    for q in range(4): a(f'ds_read_b128 {v(40+4*q,4)}, {v(vT2)} offset:{q*6144}')
    srd(a, sOut, sWS, T_BYTES, WS_T)
    a(f'''s_lshl_b32 {s(sT0)}, {s(sW)}, 4
    v_add_u32 {v(vT0)}, {s(sT0)}, {v(vT0)}
    s_cmp_eq_u32 {s(sCG)}, 3
    s_cselect_b32 {s(sT1)}, 1, 0
    s_add_u32 {s(sT1)}, {s(sT1)}, 80
    s_cmp_eq_u32 {s(sCG)}, 4
    s_cselect_b32 {s(sT2)}, 1, 0
    v_cmp_gt_u32 vcc, {s(sT1)}, {v(vT0)}
    v_cmp_le_u32 s[60:61], {s(sT2)}, {v(vT0)}
    s_mov_b32 {s(sT1)}, {4*81920}
    v_lshlrev_b32 {v(vT0)}, 3, {v(vT0)}
    v_mad_u32_u24 {v(vT0)}, {v(vT1)}, {s(sT1)}, {v(vT0)}
    s_and_b64 vcc, vcc, s[60:61]
    v_mov_b32 {v(vT3)}, {hex(OOB)}
    v_cndmask_b32 {v(vT0)}, {v(vT3)}, {v(vT0)}, vcc
    s_lshl_b32 {s(sT0)}, {s(sJ)}, 1
    s_add_u32 {s(sT0)}, {s(sT0)}, {s(sRB)}
    s_mul_i32 {s(sT0)}, {s(sT0)}, 5120
    s_mul_i32 {s(sT1)}, {s(sCG)}, 640
    s_add_u32 {s(sT0)}, {s(sT0)}, {s(sT1)}''')
    for q in range(4):
        a(f's_waitcnt lgkmcnt({3-q})')
        for hf in range(2):
            a(f'v_mfma_f32_16x16x32_bf16 {v(64+16*hf+4*q,4)}, {v(Fm[hf],4)}, {v(40+4*q,4)}, 0')
    a('s_nop 7')
    for hf in range(2):
        for i in range(4):
            d = 96 + (hf*4+i)*2; b = 64+16*hf+i
            a(f'''v_cvt_pk_bf16_f32 {v(d)}, {v(b)}, {v(b+4)}
            v_cvt_pk_bf16_f32 {v(d+1)}, {v(b+8)}, {v(b+12)}
            s_add_u32 {s(sT1)}, {s(sT0)}, {(16*hf+i)*81920}
            buffer_store_dwordx2 {v(d,2)}, {v(vT0)}, {s(sOut,4)}, {s(sT1)} offen''')
    a(f"{L('fdone')}:")
    stamp(3)
    diag_out()
    a(f"{L('end')}:")
    a('s_endpgm')
    return a.text(), kernel_desc(name, 136), 136

if __name__ == '__main__':
    t, d, nv = gen_k1()
    print(t); print(d)
```

```python
from asmlib import *
from layout import *
from images import o_kmap
from k3 import s2_setup
OOB = 0x40000000

POS = dict(pvp=2, r=5, pv00=13, pv01=18, q10=21, pv10=26, q11=30)

def gen(name='attn_kernel', diag=False, pos=POS, ldpos=(13, 18), dpos=26, sync_plan=None, prio=None, wo_bar=21, npre=7, region=1):
    a = Asm()
    L = lambda x: f'L_{name}_{x}'
    R = Regs(1)
    vLane = R.get(); vT0 = R.get(); vT1 = R.get(); vT2 = R.get(); vT3 = R.get(); vIdx = R.get(); vDma = R.get()
    aK = [R.get() for _ in range(3)]; aV = [R.get() for _ in range(3)]
    vOoff = R.get(); vOoffB = R.get()
    vWa = [R.get() for _ in range(5)]
    Qa = R.get(4, 4); Q2 = R.get(2)
    Kb = [R.get(4, 4) for _ in range(2)]
    Ka = [[R.get(4, 4) for _ in range(2)] for _ in range(2)]
    Vb = [[R.get(4, 4) for _ in range(4)] for _ in range(2)]
    S = [R.get(32, 4) for _ in range(2)]
    Mn = R.get(32, 4)
    O = R.get(16, 4)
    NI = 32
    sW=3; sWS=4; sJ=6; sI=7
    sKV=8; sQ=12; sO=16; sWo=20; sOut=24; sFl=28; sT=32; sR=36; sN=40; sD=44
    sDma=48; sVm=50; sLo=52; sCnt=54; sPB=55; sHG=56; sT0=57; sT1=58; sT2=59; sWoS=60; sWoL=61; sJob=62
    sP=64
    sTs=80
    def stamp(i):
        if diag: a(f"s_memrealtime {s(sTs+2*i,2)}")
    def diag_out():
        if not diag: return
        a('s_waitcnt vmcnt(0)')
        stamp(7)
        srd(a, sD, sWS, 0x10000, WS_DIAG + 0x10000*region)
        a(f'''s_waitcnt lgkmcnt(0)
        s_lshl_b32 {s(sT0)}, s2, 3
        s_add_u32 {s(sT0)}, {s(sT0)}, {s(sW)}
        s_lshl_b32 {s(sT0)}, {s(sT0)}, 5
        s_mov_b64 exec, 1
        v_mov_b32 v1, {s(sT0)}''')
        for i in range(8): a(f'v_mov_b32 {v(4+i)}, {s(sTs+2*i)}')
        a(f'''buffer_store_dwordx4 v[4:7], v1, {s(sD,4)}, 0 offen
        buffer_store_dwordx4 v[8:11], v1, {s(sD,4)}, 0 offen offset:16''')
    a(kernel_head(name))
    a(f'''s_cmp_ge_u32 s2, 256
    s_cbranch_scc1 {L('end')}''')
    stamp(0)
    a(f'''s_load_dwordx2 {s(sWS,2)}, s[0:1], 96
    s_load_dwordx4 {s(sP,4)}, s[0:1], 8
    s_load_dwordx4 {s(sP+4,4)}, s[0:1], 72
    v_lshrrev_b32 {v(vT0)}, 6, v0
    v_and_b32 {v(vLane)}, 63, v0
    v_readfirstlane_b32 {s(sW)}, {v(vT0)}
    v_lshlrev_b32 {v(vDma)}, 4, {v(vLane)}
    s_and_b32 {s(sJ)}, s2, 7
    s_lshr_b32 {s(sI)}, s2, 3
    s_and_b32 {s(sHG)}, {s(sI)}, 7
    s_lshr_b32 {s(sPB)}, {s(sI)}, 3
    s_lshl_b32 {s(sT0)}, {s(sJ)}, 2
    s_add_u32 {s(sPB)}, {s(sPB)}, {s(sT0)}
    s_lshr_b32 {s(sT0)}, {s(sW)}, 2
    s_lshl_b32 {s(sT1)}, {s(sPB)}, 1
    s_add_u32 {s(sT0)}, {s(sT0)}, {s(sT1)}
    s_lshl_b32 {s(sT1)}, {s(sT0)}, 3
    s_add_u32 {s(sT1)}, {s(sT1)}, {s(sHG)}
    s_mul_i32 {s(sT1)}, {s(sT1)}, 5120
    s_and_b32 {s(sT2)}, {s(sW)}, 3
    s_mul_i32 {s(sCnt)}, {s(sT2)}, 1280
    s_add_u32 {s(sCnt)}, {s(sCnt)}, {s(sT1)}
    s_lshl_b32 {s(sDma)}, {s(sW)}, 10
    s_mov_b32 m0, {s(sDma)}
    v_and_b32 {v(vT0)}, 31, {v(vLane)}
    v_lshlrev_b32 {v(vT1)}, 3, {v(vT0)}
    s_waitcnt lgkmcnt(0)''')
    srd(a, sKV, sWS, KV_BYTES, WS_KV)
    srd(a, sQ, sWS, Q_BYTES, WS_Q)
    ndma = [0]
    def dma():
        r = ndma[0]; ndma[0] += 1
        a(f'buffer_load_dwordx4 {v(vDma)}, {s(sKV,4)}, {s(sDma)} offen lds')
        if r < 19:
            a(f's_add_u32 {s(sDma)}, {s(sDma)}, 8192')
            a(f's_mov_b32 m0, {s(sDma)}')
    dma()
    a(f'''buffer_load_dwordx4 {v(Qa,4)}, {v(vDma)}, {s(sQ,4)}, {s(sCnt)} offen
    buffer_load_dwordx2 {v(Q2,2)}, {v(vT1)}, {s(sQ,4)}, {s(sCnt)} offen offset:1024''')
    dma(); a('s_nop 0'); dma(); a('s_nop 0'); dma()
    srd(a, sO, sWS, O_BYTES, WS_O); srd(a, sFl, sWS, FLAG_BYTES, WS_FLAG)
    srd(a, sWo, sP+4, W_BYTES); srd(a, sOut, sP+6, OUT_BYTES)
    a(f'''s_lshl_b32 {s(sT0)}, {s(sT2)}, 10
    s_add_u32 {s(sT0)}, {s(sT0)}, {s(sT1)}
    v_add_u32 {v(vOoff)}, {s(sT0)}, {v(vDma)}
    s_lshr_b32 {s(sT0)}, {s(sT2)}, 1
    s_lshl_b32 {s(sT0)}, {s(sT0)}, 9
    s_and_b32 {s(sT2)}, {s(sT2)}, 1
    s_lshl_b32 {s(sT2)}, {s(sT2)}, 3
    s_add_u32 {s(sT0)}, {s(sT0)}, {s(sT2)}
    s_add_u32 {s(sT0)}, {s(sT0)}, {s(sT1)}
    s_add_u32 {s(sT0)}, {s(sT0)}, 4096
    v_add_u32 {v(vOoffB)}, {s(sT0)}, {v(vDma)}
    v_lshrrev_b32 {v(vT1)}, 5, {v(vLane)}
    v_mul_u32_u24 {v(vT1)}, 20, {v(vT1)}
    v_add_u32 {v(vT1)}, {v(vT1)}, {v(vT0)}
    v_lshlrev_b32 {v(vT1)}, 4, {v(vT1)}''')
    for b in range(3):
        a(f'v_add_u32 {v(aK[b])}, {b*61440}, {v(vDma)}')
        a(f'v_add_u32 {v(aV[b])}, {b*61440+5120}, {v(vT1)}')
    a(f'''s_mov_b32 {s(sVm)}, 0x000fffff
    s_mov_b32 {s(sVm+1)}, 0x000fffff
    s_mov_b32 {s(sLo)}, -1
    s_mov_b32 {s(sLo+1)}, 0
    v_mov_b32 {v(vIdx)}, 0xdddddddd
    v_and_b32 {v(vT1)}, 0x1b, {v(vLane)}
    v_cmp_eq_u32 vcc, 24, {v(vT1)}
    v_mov_b32 {v(vT1)}, {hex(ONES)}
    s_mov_b32 {s(sT1)}, 6554
    v_cndmask_b32 {v(vT1)}, 0, {v(vT1)}, vcc''')
    for r in [x for p in Vb for x in p]:
        for i in range(4): a(f'v_mov_b32 {v(r+i)}, {v(vT1)}')
    for i in range(16): a(f'v_mov_b32 {v(O+i)}, 0')
    for q in range(5):
        a(f'''v_add_u32 {v(vT0)}, {64*q}, {v(vLane)}
        v_mul_u32_u24 {v(vT1)}, {s(sT1)}, {v(vT0)}
        v_lshrrev_b32 {v(vT1)}, 16, {v(vT1)}
        v_mul_u32_u24 {v(vT1)}, {1280-160}, {v(vT1)}
        v_lshl_add_u32 {v(vWa[q])}, {v(vT0)}, 4, {v(vT1)}''')
    a(f'''s_mul_i32 {s(sWoS)}, {s(sW)}, {80*1280}
    s_mul_i32 {s(sT0)}, {s(sHG)}, 160
    s_add_u32 {s(sWoS)}, {s(sWoS)}, {s(sT0)}
    s_mul_i32 {s(sWoL)}, {s(sW)}, 12800''')
    nwo = [0]
    def wodma():
        n = nwo[0]; nwo[0] += 1
        blk, q = divmod(n, 5)
        a(f'''s_add_u32 m0, {s(sWoL)}, {n*1024}
        s_add_u32 {s(sT0)}, {s(sWoS)}, {blk*32*1280}''')
        if n == 12: a(f's_mov_b64 exec, {s(sLo,2)}')
        a(f'buffer_load_dwordx4 {v(vWa[q])}, {s(sWo,4)}, {s(sT0)} offen lds')
        if n == 12: a('s_mov_b64 exec, -1')

    def rdKa(dst, t):
        u, tt = divmod(t, 4); b, uu = divmod(u, 6)
        a(f'ds_read_b128 {v(dst,4)}, {v(aK[b])} offset:{uu*10240 + tt*1024}')
    def rdKb(u):
        b, uu = divmod(u, 6)
        a(f'ds_read_b128 {v(Kb[u%2],4)}, {v(aK[b])} offset:{uu*10240 + 4096}')
    def rdV(dst, t, f):
        u, tt = divmod(t, 4); b, uu = divmod(u, 6)
        a(f'ds_read_b128 {v(dst,4)}, {v(aV[b])} offset:{uu*10240 + (tt*2+f)*640}')
    kahome = lambda i, x: Ka[(i-1) % 2][x]
    vhome = lambda i, x, f: Vb[i % 2][2*x+f]
    def groupK(g):
        if g+1 >= NI: return
        for x in range(2): rdKa(kahome(g+1, x), 2*(g+1)+x)
        if (g+1) % 2 == 0: rdKb((g+1)//2)
    def groupV(g):
        if g >= NI: return
        a(f's_mov_b64 exec, {s(sVm,2)}')
        for x in range(2):
            for f in range(2): rdV(vhome(g, x, f), 2*g+x, f)
        a('s_mov_b64 exec, -1')
    def qk1(i, x, ka=None):
        d = S[i%2]+16*x
        a(f'v_mfma_f32_32x32x16_bf16 {v(d,16)}, {v(ka if ka else kahome(i,x),4)}, {v(Qa,4)}, {v(d,16)}')
    def r2b(i, c):
        kb = Kb[(i//2)%2] + 2*(i%2)
        a(f'v_mfma_f32_32x32x4_2b_bf16 {v(S[i%2],32)}, {v(kb,2)}, {v(Q2,2)}, {c}')
    def pv(i, x, f):
        a(f'v_smfmac_f32_32x32x32_bf16 {v(O,16)}, {v(vhome(i,x,f),4)}, {v(S[i%2]+16*x+8*f,8)}, {v(vIdx)}')

    a('s_waitcnt vmcnt(3)')
    a('s_barrier')
    stamp(1)
    rdKb(0); rdKa(kahome(0,0), 0); rdKa(kahome(0,1), 1)
    groupK(0); groupV(0)
    a('s_waitcnt lgkmcnt(8)')
    r2b(0, '0')
    dma(); a('s_nop 0'); dma()
    a('s_nop 10')
    a('s_waitcnt lgkmcnt(6)')
    qk1(0, 0); qk1(0, 1)
    a('s_nop 10')
    s0 = S[0]
    a(f'v_max3_f32 {v(vT0)}, {v(s0)}, {v(s0+1)}, {v(s0+2)}')
    for i in range(3, 31, 2): a(f'v_max3_f32 {v(vT0)}, {v(vT0)}, {v(s0+i)}, {v(s0+i+1)}')
    a(f'''v_max_f32 {v(vT0)}, {v(vT0)}, {v(s0+31)}
    v_mov_b32 {v(vT1)}, {v(vT0)}
    s_nop 1
    v_permlane32_swap_b32 {v(vT0)}, {v(vT1)}
    s_nop 1
    v_max_f32 {v(vT0)}, {v(vT0)}, {v(vT1)}
    v_sub_f32 {v(Mn)}, {-M_OFF2}, {v(vT0)}
    v_sub_f32 {v(Mn+1)}, {-M_OFF2}, {v(vT0)}''')
    for i in range(2, 32, 2): a(f'v_pk_mov_b32 {v(Mn+i,2)}, {v(Mn,2)}, {v(Mn,2)}')
    for i in range(0, 32, 2): a(f'v_pk_add_f32 {v(s0+i,2)}, {v(s0+i,2)}, {v(Mn,2)}')
    stamp(2)
    def need(g):
        hi = 0
        if g+1 < NI: hi = ((g+1)//2)*10240 + 5120
        if g < NI: hi = max(hi, (g//2)*10240 + 5120 + ((g%2)*4+4)*640)
        return hi
    synced = [8192]
    if sync_plan is None: sync_plan = {1: 3, 5: 11, 17: 19}
    if prio is None: prio = {0: 3, 2: 2, 3: 1, 4: 3, 11: 2, 14: 1, 15: 0, 16: 3, 18: 2, 19: 1, 20: 0, 21: 3, 27: 2, 30: 1, 31: 0}
    for i in range(NI):
        ev = {}
        def at(p, fn): ev.setdefault(p, []).append(fn)
        if i in prio: at(0, lambda: a(f's_setprio {prio[i]}'))
        at(0, lambda: a('s_waitcnt lgkmcnt(0)'))
        if i == wo_bar:
            assert i >= 20
            at(0, lambda: a('s_barrier'))
        def ldk():
            gn = i+1
            if gn in sync_plan:
                r = sync_plan[gn]
                assert ndma[0] > r and nwo[0] == 0
                a(f's_waitcnt vmcnt({ndma[0]-1-r})')
                a('s_barrier')
                synced[0] = (r+1)*8192
            assert need(gn) <= synced[0], (gn, need(gn), synced[0])
            groupK(gn)
        at(ldpos[0], ldk)
        at(ldpos[1], lambda: groupV(i+1))
        def dm():
            for _ in range(2):
                if ndma[0] < 20: dma(); a('s_nop 0')
                elif i >= wo_bar and nwo[0] < 13: wodma()
        at(dpos, dm)
        if i > 0: at(pos['pvp'], lambda: pv(i-1, 1, 1))
        if i+1 < NI:
            at(pos['r'], lambda: r2b(i+1, v(Mn,32)))
            for x in range(2): at(pos[f'q1{x}'], lambda x=x: qk1(i+1, x))
        at(pos['pv00'], lambda: pv(i, 0, 0)); at(pos['pv01'], lambda: pv(i, 0, 1)); at(pos['pv10'], lambda: pv(i, 1, 0))
        for e in range(33):
            for fn in ev.get(e, []): fn()
            if e < 32: a(f'v_exp_f32 {v(S[i%2]+e)}, {v(S[i%2]+e)}')
    assert nwo[0] == 13 and ndma[0] == 20
    a('s_nop 1')
    pv(NI-1, 1, 1)
    stamp(3)
    a(f'''s_lshl_b32 {s(sT0)}, {s(sPB)}, 3
    s_add_u32 {s(sT0)}, {s(sT0)}, {s(sHG)}
    s_lshl_b32 {s(sT0)}, {s(sT0)}, 3
    s_add_u32 {s(sT0)}, {s(sT0)}, {s(sW)}
    s_lshl_b32 {s(sT0)}, {s(sT0)}, 6
    v_mov_b32 {v(vT2)}, {s(sT0)}
    v_mov_b32 {v(vT3)}, 1
    s_mov_b32 {s(sT1)}, 0x0c000000            ; 2^-103
    s_nop 4''')
    a(f'v_mul_f32 {v(vT0)}, 0, {v(O+12)}')
    a(f'v_max3_f32 {v(vT1)}, abs({v(O)}), abs({v(O+1)}), abs({v(O+2)})')
    for i in range(12): a(f'v_fmac_f32 {v(vT0)}, 0, {v(O+i)}')
    a(f'v_max3_f32 {v(vT1)}, {v(vT1)}, abs({v(O+3)}), abs({v(O+4)})')
    a(f'v_max3_f32 {v(vT1)}, {v(vT1)}, abs({v(O+5)}), abs({v(O+6)})')
    a(f'v_max3_f32 {v(vT1)}, {v(vT1)}, abs({v(O+7)}), abs({v(O+7)})')
    a(f'''v_add_f32 {v(vT0)}, {v(vT0)}, {v(vT1)}
    v_cmp_nle_f32 vcc, {s(sT1)}, {v(vT0)}
    s_cbranch_vccnz {L('slow')}
{L('fin')}:
    v_rcp_f32 {v(vT0)}, {v(O+12)}
    s_nop 0''')
    pk = S[0]
    for i in range(12): a(f'v_mul_f32 {v(O+i)}, {v(O+i)}, {v(vT0)}')
    for i in range(6): a(f'v_cvt_pk_bf16_f32 {v(pk+i)}, {v(O+2*i)}, {v(O+2*i+1)}')
    a(f'''buffer_store_dwordx4 {v(pk,4)}, {v(vOoff)}, {s(sO,4)}, 0 offen sc1
    s_mov_b64 exec, {s(sLo,2)}
    buffer_store_dwordx2 {v(pk+4,2)}, {v(vOoffB)}, {s(sO,4)}, 0 offen sc1
    s_mov_b64 exec, 1
    s_waitcnt vmcnt(0)
    buffer_store_dword {v(vT3)}, {v(vT2)}, {s(sFl,4)}, 0 offen sc1
    s_mov_b64 exec, -1''')
    stamp(4)
    a(f'''s_barrier
    s_cmp_ge_u32 {s(sW)}, 4
    s_cbranch_scc1 {L('s2')}''')
    Of = 176
    acc = [156+4*m for m in range(5)]
    nbuf = npre
    Wf = [[16+20*b+4*m for m in range(5)] for b in range(nbuf)]
    assert 16+20*nbuf <= 156
    aW = [6+i for i in range(10)]
    km = o_kmap()
    a(f'''v_and_b32 {v(vT0)}, 15, {v(vLane)}
    v_lshrrev_b32 {v(vT1)}, 4, {v(vLane)}            ; g
    v_bfe_u32 {v(vT2)}, {v(vLane)}, 2, 2
    v_mul_u32_u24 {v(vT2)}, 160, {v(vT2)}
    v_and_b32 {v(vT3)}, 3, {v(vLane)}
    v_lshl_add_u32 {v(vT2)}, {v(vT3)}, 3, {v(vT2)}
    v_lshlrev_b32 {v(vT3)}, 3, {v(vT1)}''')
    for st in range(5):
        for rd in range(2):
            rows = [int(km[2*st + g//2, g%2, 4*rd]) for g in range(4)]
            packed = sum(r << (8*g) for g, r in enumerate(rows))
            a(f'''s_mov_b32 {s(sT1)}, {hex(packed)}
            v_bfe_u32 {v(aW[2*st+rd])}, {s(sT1)}, {v(vT3)}, 8
            v_mul_u32_u24 {v(aW[2*st+rd])}, 160, {v(aW[2*st+rd])}
            v_add_u32 {v(aW[2*st+rd])}, {v(aW[2*st+rd])}, {v(vT2)}''')
    bumped = [False]
    def rdW(st):
        per, ss = divmod(st, 5)
        if per == 2 and not bumped[0]:
            for r in aW: a(f'v_add_u32 {v(r)}, {2*25600}, {v(r)}')
            bumped[0] = True
        out = []
        for m in range(5):
            for rd in range(2):
                out.append(f'ds_read_b64_tr_b16 {v(Wf[st%nbuf][m]+2*rd,2)}, {v(aW[2*ss+rd])} offset:{(per%2)*25600+32*m}')
        return out
    for st in range(nbuf):
        for x in rdW(st): a(x)
    vF, vO, vSt = vT2, vT3, vLane
    a(f'''v_and_b32 {v(vF)}, 31, {v(vLane)}
    v_lshrrev_b32 {v(vO)}, 2, {v(vF)}
    v_lshl_add_u32 {v(vF)}, {v(vO)}, 2, {v(vF)}      ; hg'*8 + (l&3)
    v_lshlrev_b32 {v(vF)}, 6, {v(vF)}
    s_lshl_b32 {s(sT0)}, {s(sPB)}, 12
    s_lshr_b32 {s(sT1)}, {s(sW)}, 1
    s_lshl_b32 {s(sT2)}, {s(sT1)}, 8
    s_add_u32 {s(sT2)}, {s(sT2)}, {s(sT0)}
    v_lshlrev_b32 {v(vO)}, 9, {v(vT1)}
    v_lshl_add_u32 {v(vO)}, {v(vT0)}, 4, {v(vO)}
    s_lshl_b32 {s(sT0)}, {s(sPB)}, 1
    s_add_u32 {s(sT0)}, {s(sT0)}, {s(sT1)}
    s_mul_i32 {s(sT0)}, {s(sT0)}, 40960
    s_and_b32 {s(sT1)}, {s(sW)}, 1
    s_lshl_b32 {s(sT1)}, {s(sT1)}, 8
    s_add_u32 {s(sT0)}, {s(sT0)}, {s(sT1)}
    s_mov_b32 {s(sCnt)}, 0x400000
{L('poll')}:
    buffer_load_dword {v(Of)}, {v(vF)}, {s(sFl,4)}, {s(sT2)} offen sc1
    s_sub_u32 {s(sCnt)}, {s(sCnt)}, 1
    s_cbranch_scc1 {L('polled')}
    s_waitcnt vmcnt(0)
    v_cmp_ne_u32 vcc, 1, {v(Of)}
    s_cbranch_vccnz {L('poll')}
{L('polled')}:''')
    stamp(5)
    for st in range(20):
        a(f'buffer_load_dwordx4 {v(Of+4*st,4)}, {v(vO)}, {s(sO,4)}, {s(sT0)} offen offset:{(st%2)*2048} sc1')
        if st % 2 == 1 and st < 19: a(f's_add_u32 {s(sT0)}, {s(sT0)}, 4096')
    a(f'''s_lshl_b32 {s(sT0)}, {s(sPB)}, 2
    s_add_u32 {s(sT0)}, {s(sT0)}, {s(sW)}
    s_mul_i32 {s(sT0)}, {s(sT0)}, {16*2560}
    s_mul_i32 {s(sT1)}, {s(sHG)}, 160
    s_add_u32 {s(sT0)}, {s(sT0)}, {s(sT1)}
    s_add_u32 {s(sT0)}, {s(sT0)}, 1280
    v_mul_u32_u24 {v(vT0)}, 2560, {v(vT0)}
    v_lshl_add_u32 {v(vF)}, {v(vT1)}, 3, {v(vT0)}        ; 8B pieces
    v_and_b32 {v(vO)}, 1, {v(vT1)}
    v_lshl_add_u32 {v(vT0)}, {v(vO)}, 5, {v(vT0)}
    v_lshrrev_b32 {v(vO)}, 1, {v(vT1)}
    v_lshl_add_u32 {v(vSt)}, {v(vO)}, 4, {v(vT0)}''')
    pend = []
    for st in range(20):
        nxt = st + nbuf - 1
        rd = rdW(nxt) if (st >= 1 and nxt < 20) else []
        if st == 0: a(f's_waitcnt vmcnt(19) lgkmcnt(0)')
        elif st >= nbuf:
            younger = min(19, st + nbuf - 2) - st
            a(f's_waitcnt vmcnt({19-st}) lgkmcnt({min(15, 10*younger)})')
        else: a(f's_waitcnt vmcnt({19-st})')
        for m in range(5):
            c = '0' if st == 0 else v(acc[m],4)
            a(f'v_mfma_f32_16x16x32_bf16 {v(acc[m],4)}, {v(Wf[st%nbuf][m],4)}, {v(Of+4*st,4)}, {c}')
            for x in rd[2*m:2*m+2]: a(x)
    stamp(6)
    a('s_nop 7')
    for m in range(5):
        for i in range(2): a(f'v_cvt_pk_bf16_f32 {v(16+2*m+i)}, {v(acc[m]+2*i)}, {v(acc[m]+2*i+1)}')
    a(f'buffer_store_dwordx2 {v(24,2)}, {v(vF)}, {s(sOut,4)}, {s(sT0)} offen offset:128')
    for pr in range(2):
        a(f'''v_permlane16_swap_b32 {v(16+4*pr)}, {v(18+4*pr)}
        v_permlane16_swap_b32 {v(17+4*pr)}, {v(19+4*pr)}''')
    for pr in range(2):
        a(f'buffer_store_dwordx4 {v(16+4*pr,4)}, {v(vSt)}, {s(sOut,4)}, {s(sT0)} offen offset:{64*pr}')
    diag_out()
    a('s_endpgm')
    a(f"{L('s2')}:")
    sr = dict(t0=sT0, t1=sT1, t2=sT2, slot=72, et=73, pC=74, pS=75)
    vr = dict(t0=vT0, t1=vT1, t2=vT2, aR=8, aA=9, aB=10, oU=11, oW=12)
    a(f'''s_cmp_eq_u32 {s(sW)}, 7
    s_cbranch_scc1 {L('nojob')}
    s_mul_i32 {s(sJob)}, {s(sI)}, 3
    s_add_u32 {s(sJob)}, {s(sJob)}, {s(sW)}
    s_sub_u32 {s(sJob)}, {s(sJob)}, 4''')
    s2_setup(a, L, sJob, sJ, vLane, sr, vr)
    srd(a, sT, sWS, T_BYTES, WS_T); srd(a, sR, sP, SEQ_BYTES); srd(a, sN, sP+2, SEQ_BYTES)
    Rf, Nf, Tf, P, Q = 16, 32, 48, 112, 128
    for ks in range(4):
        a(f'buffer_load_dwordx4 {v(Rf+4*ks,4)}, {v(vr["aR"])}, {s(sR,4)}, 0 offen offset:{32*ks}')
        a(f'buffer_load_dwordx4 {v(Nf+4*ks,4)}, {v(vr["aR"])}, {s(sN,4)}, 0 offen offset:{32*ks}')
    chains = [('aA','pC',Rf,P), ('aB','pC',Nf,Q), ('aA','pS',Nf,P), ('aB','pS',Rf,Q)]
    for ci, (ad, pl, cf, ac) in enumerate(chains):
        for ks in range(4):
            for rd in range(2):
                a(f'''s_add_u32 {s(sT0)}, {s(sr[pl])}, {(4*ks+rd)*5120}
                buffer_load_dwordx2 {v(Tf+16*ci+4*ks+2*rd,2)}, {v(vr[ad])}, {s(sT,4)}, {s(sT0)} offen''')
    stamp(5)
    for ci, (ad, pl, cf, ac) in enumerate(chains):
        a(f's_waitcnt vmcnt({8*(3-ci)})')
        for ks in range(4):
            c = '0' if (ci < 2 and ks == 0) else v(ac,16)
            a(f'v_mfma_f32_32x32x16_bf16 {v(ac,16)}, {v(Tf+16*ci+4*ks,4)}, {v(cf+4*ks,4)}, {c}')
    stamp(6)
    a('s_nop 15')
    for i in range(0, 16, 2):
        a(f'v_pk_add_f32 {v(16+i,2)}, {v(P+i,2)}, {v(Q+i,2)} neg_lo:[0,1] neg_hi:[0,1]')
        a(f'v_pk_add_f32 {v(32+i,2)}, {v(P+i,2)}, {v(Q+i,2)}')
    for i in range(16): a(f'v_cvt_pk_bf16_f32 {v(48+i)}, {v(16+2*i)}, {v(17+2*i)}')
    for hh in range(2):
        a(f'buffer_store_dwordx4 {v(48+4*hh,4)}, {v(vr["oU"])}, {s(sOut,4)}, 0 offen offset:{32*hh}')
        a(f'buffer_store_dwordx4 {v(56+4*hh,4)}, {v(vr["oW"])}, {s(sOut,4)}, 0 offen offset:{32*hh}')
    if diag: a(f"s_branch {L('s2done')}")
    a(f"{L('nojob')}:")
    stamp(5); stamp(6)
    a(f"{L('s2done')}:")
    diag_out()
    a(f"{L('end')}:")
    a('s_endpgm')
    a(f"{L('slow')}:")
    a(f'v_mov_b32 {v(Mn)}, 0xff800000')
    for ps in range(2):
        a(f'''s_mov_b32 {s(sCnt)}, 0
{L('slow%d' % ps)}:''')
        for hf in range(2):
            a(f'''s_add_u32 {s(sT1)}, {s(sCnt)}, {4096}
            buffer_load_dwordx4 {v(Kb[0],4)}, {v(vDma)}, {s(sKV,4)}, {s(sT1)} offen''')
            for x in range(2):
                a(f'buffer_load_dwordx4 {v(Ka[0][x],4)}, {v(vDma)}, {s(sKV,4)}, {s(sCnt)} offen offset:{(2*hf+x)*1024}')
            if ps == 1:
                a(f'''s_add_u32 {s(sT1)}, {s(sCnt)}, {hf*2560}
                s_mov_b64 exec, {s(sVm,2)}''')
                for f in range(4):
                    a(f'buffer_load_dwordx4 {v(Vb[0][f],4)}, {v(aV[0])}, {s(sKV,4)}, {s(sT1)} offen offset:{f*640}')
                a('s_mov_b64 exec, -1')
            a(f'''s_waitcnt vmcnt(0)
            v_mfma_f32_32x32x4_2b_bf16 {v(s0,32)}, {v(Kb[0]+2*hf,2)}, {v(Q2,2)}, 0
            s_nop 15
            s_nop 3''')
            for x in range(2): qk1(0, x, Ka[0][x])
            a('s_nop 15')
            if ps == 0:
                for i in range(0, 32, 2): a(f'v_max3_f32 {v(Mn)}, {v(Mn)}, {v(s0+i)}, {v(s0+i+1)}')
            else:
                for i in range(32): a(f'v_sub_f32 {v(s0+i)}, {v(s0+i)}, {v(Mn)}')
                for i in range(32): a(f'v_exp_f32 {v(s0+i)}, {v(s0+i)}')
                a('s_nop 1')
                for x in range(2):
                    for f in range(2): pv(0, x, f)
                a('s_nop 7')
        a(f'''s_add_u32 {s(sCnt)}, {s(sCnt)}, 10240
        s_cmp_lt_u32 {s(sCnt)}, {KV_BYTES}
        s_cbranch_scc1 {L('slow%d' % ps)}''')
        if ps == 0:
            a(f'''v_mov_b32 {v(vT1)}, {v(Mn)}
            s_nop 1
            v_permlane32_swap_b32 {v(Mn)}, {v(vT1)}
            s_nop 1
            v_max_f32 {v(Mn)}, {v(Mn)}, {v(vT1)}''')
            for i in range(16): a(f'v_mov_b32 {v(O+i)}, 0')
    a(f'''s_nop 15
    s_branch {L('fin')}''')
    return a.text(), kernel_desc(name, 256), 256
```

```python
WS_KV = 0x0
KV_BYTES = 163840
WS_Q  = 0x40000
Q_BYTES = 2048*1280
WS_O  = 0x300000
O_BYTES = 64*40960
WS_G  = 0x600000
WS_DIAG = 0x1000000
M_OFF = 48.0
WS_T = WS_G
T_BYTES = 32*16*640*8
X_BYTES = 2048*1280
W_BYTES = 640*1280
WKV_BYTES = 640*40
SEQ_BYTES = 2048*4096
OUT_BYTES = 2048*2560
import math
QSCALE = math.log2(math.e) / math.sqrt(20.0)
WS_FLAG = 0x900000
FLAG_BYTES = 2048*64
M_OFF2 = 95.0
VSCALE = 2.0**24
ONES = 0x4b804b80
```

```python
from build import *
import k2f, re
def parts(st=''):
    t1, d1, _ = k1.gen_k1(fused=True, nt='nt', early=2, xrole=True); t2, d2, _ = k2f.gen()
    if st:
        t2 = re.sub(r'(buffer_store_dword\w* [^\n]*s\[24:27\][^\n]*)', r'\1 ' + st, t2)
    return [('prep_kernel', t1, d1, 256, 512, 153600), ('attn_kernel', t2, d2, 256, 512, 163840)]
build(parts(), 'w0.s')
build(parts('nt'), 'w1.s')
build(parts('sc1'), 'w2.s')
build(parts('sc0 sc1'), 'w3.s')
build(parts('sc1 nt'), 'w4.s')
```

```python
from asmlib import *
from zl import *
import struct
def fhex(x): return hex(struct.unpack('<I', struct.pack('<f', x))[0])
OOB = 0x40000000
POS = dict(q10=0, pvp=3, q11=6, pv00=10, r=15, pv01=23, pv10=29)

def gen(name, diag=False, dumpq=False, pos=POS, ldpos=(12, 23), dpos=29, s2pos=(11, 14, 32), sync_plan=None, dma_plan=None, prio=None, prio_y=None, wo_bar=21, npre=9, wo_vis=29, epoll=2, ofl='sc1', pfl='sc1', oahead=5, wpre=2, pretouch=5, cnt2=True, wqrot=False, spf=0, hlate=((-1, -1), (-1, -1)), skipo=True, outtouch=None, glag=0, moff=M_OFF, upd=(6,), updpos=(19, 21, 25, 29), ost='nt', rlast=True, ogate=15, wotouch=6, kvtouch=True, s2fast=0, outst='',
        pollA=7, touch=True, cpf='pre', dbg=(), lead=18, lead0=12, leads=(24, 20, 18, 16, 16), kvflag=2, kv0=4, kvw=3, qtail=True, dfq=6, dfh=2, tspos=1, fast=True, nwo_it=4, view=(), cyc=False, satom=True, ntT='', ntB='', s2it=8, s2sts=(26,27,28,29), s2st='nt', ndma_it=3):
    a = Asm()
    L = lambda x: f'L_{x}'
    sW=3; sJ=4; sI=5; sPB=6; sHG=7
    rXA=8; rRe=12; rIm=16; rXB=20; rWq=24; rWk=28; rWv=32; rWo=36; rOut=40; rWS=44
    sTag=48; sT0=49; sT1=50; sT2=51; sT3=52; sCnt=53; sVm=54; sLo=56; sDma=58; sJob=59
    sSlot=60; sEt=61; sPC=62; sPS=63; sWoS=64; sWoL=65; sOa=66; sOb=67; sA=68; sB=69; sC=70; sD=71; sE=72; sF=73; sM=74
    rDb=76; sFast=80; sXcc=81; sCt=82
    sTs=86
    NST = 8
    def stamp(n):
        if not diag: return
        k = 0 if n == 'start' else NST-1 if n == 'end' else (1 + view.index(n)) if n in view else None
        if k is not None: a(f"{'s_memtime' if cyc else 's_memrealtime'} {s(sTs+2*k,2)}")
    def diag_out():
        if not diag or diag == 'start': return
        a('s_waitcnt vmcnt(0)')
        stamp('end')
        a(f'''s_waitcnt lgkmcnt(0)
        s_lshl_b32 {s(sT0)}, s2, 3
        s_add_u32 {s(sT0)}, {s(sT0)}, {s(sW)}
        s_lshl_b32 {s(sT0)}, {s(sT0)}, 6
        s_add_u32 {s(sT0)}, {s(sT0)}, {hex(WS_DIAG)}
        s_mov_b64 exec, 1
        v_mov_b32 v1, {s(sT0)}''')
        for i in range(NST): a(f'v_mov_b32 {v(4+i)}, {s(sTs+2*i)}')
        for i in range(NST//4): a(f'buffer_store_dwordx4 {v(4+4*i,4)}, v1, {s(rWS,4)}, 0 offen offset:{16*i}')
    vLane=1; vT0=2; vT1=3; vT2=4; vT3=5; vIdx=6; vDma=7
    aK=[7,8,9]; aV=[10,11,12]; aKb=[13,14]; aR=15; aA=16; aB=17; vWa=[18,19,20,21,22]; vSp=23
    Vb=[[24+16*p+4*f for f in range(4)] for p in range(2)]
    O=56; Qa=72; Q2=76; Kb=[80,84]; Ka=[[88,92],[96,100]]; S=[104,136]; Mn=168
    P2=184; Q2a=200; Bt=216
    aWn=[240,241]; aWr=242; vF=243; vO=244; vOb=245; vSt=246; vSt8=247
    WOL = 10240
    NI = 32
    def spin(lbl, loads, check):
        a(f'''s_mov_b32 {s(sCnt)}, 0x40000
{L(lbl)}:''')
        loads()
        a(f'''s_sub_u32 {s(sCnt)}, {s(sCnt)}, 1
        s_cbranch_scc1 {L(lbl+'x')}
        s_waitcnt vmcnt(0)''')
        check()
        a(f'''s_cbranch_vccnz {L(lbl)}
{L(lbl+'x')}:''')

    def attn_setup():
        a(f'''v_and_b32 {v(vT0)}, 31, {v(vLane)}
        v_lshrrev_b32 {v(vT1)}, 5, {v(vLane)}
        v_mul_u32_u24 {v(vT1)}, 20, {v(vT1)}
        v_add_u32 {v(vT1)}, {v(vT1)}, {v(vT0)}
        v_lshlrev_b32 {v(vT1)}, 4, {v(vT1)}''')
        for b in range(3):
            if b: a(f'v_add_u32 {v(aK[b])}, {b*61440}, {v(vDma)}')
            a(f'v_add_u32 {v(aV[b])}, {b*61440+5120}, {v(vT1)}')
        a(f'''v_lshlrev_b32 {v(aKb[0])}, 3, {v(vLane)}
        v_add_u32 {v(aKb[1])}, {8*10240}, {v(aKb[0])}
        s_mov_b32 {s(sVm)}, 0x000fffff
        s_mov_b32 {s(sVm+1)}, 0x000fffff
        v_mov_b32 {v(vIdx)}, 0xdddddddd
        v_and_b32 {v(vT1)}, 0x1b, {v(vLane)}
        v_cmp_eq_u32 vcc, 24, {v(vT1)}
        v_mov_b32 {v(vT1)}, {hex(ONES)}
        s_mov_b32 {s(sT1)}, 6554
        v_cndmask_b32 {v(24)}, 0, {v(vT1)}, vcc
        v_cndmask_b32 {v(25)}, 0, {v(vT1)}, vcc
        v_mov_b32 {v(O)}, 0
        v_mov_b32 {v(O+1)}, 0''')
        for r in range(26, 56, 2): a(f'v_pk_mov_b32 {v(r,2)}, v[24:25], v[24:25]')
        for r in range(O+2, O+16, 2): a(f'v_pk_mov_b32 {v(r,2)}, {v(O,2)}, {v(O,2)}')
        for q in range(5):
            a(f'''v_add_u32 {v(vT0)}, {64*q}, {v(vLane)}
            v_mul_u32_u24 {v(vT1)}, {s(sT1)}, {v(vT0)}
            v_lshrrev_b32 {v(vT1)}, 16, {v(vT1)}
            v_mul_u32_u24 {v(vT1)}, {1280-160}, {v(vT1)}
            v_lshl_add_u32 {v(vWa[q])}, {v(vT0 if q == 4 else vLane)}, 4, {v(vT1)}''')
        a(f'''s_mul_i32 {s(sWoS)}, {s(sW)}, {160*1280}
        s_mul_i32 {s(sT0)}, {s(sHG)}, 160
        s_add_u32 {s(sWoS)}, {s(sWoS)}, {s(sT0)}
        s_mul_i32 {s(sWoL)}, {s(sW)}, 25600
        s_add_u32 {s(sWoL)}, {s(sWoL)}, {WOL}
        s_and_b32 {s(sT0)}, {s(sW)}, 1
        s_lshl1_add_u32 {s(sT0)}, {s(sPB)}, {s(sT0)}
        s_lshl3_add_u32 {s(sT0)}, {s(sT0)}, {s(sHG)}
        s_mul_i32 {s(sT0)}, {s(sT0)}, 5120
        s_add_u32 {s(sT0)}, {s(sT0)}, {hex(WS_O)}
        s_lshr_b32 {s(sT1)}, {s(sW)}, 1
        s_lshl_b32 {s(sOa)}, {s(sT1)}, 10
        s_add_u32 {s(sOa)}, {s(sOa)}, {s(sT0)}
        s_lshl_b32 {s(sOb)}, {s(sT1)}, 8
        s_add_u32 {s(sOb)}, {s(sOb)}, {s(sT0)}
        s_add_u32 {s(sOb)}, {s(sOb)}, 4096
        s_lshl_b32 {s(sDma)}, {s(sW)}, 12''')
    def count_add(word, scalar=False):
        a(f"""s_and_b32 {s(sT0)}, {s(sI)}, 3
        s_lshl_b32 {s(sT0)}, {s(sT0)}, 6""")
        if scalar:
            assert word == 0
            a(f's_mov_b32 {s(sT1)}, 1\ns_atomic_add {s(sT1)}, {s(rDb,2)}, {s(sT0)}')
        else:
            a(f"""v_mov_b32 {v(vT2)}, 1
            s_mov_b64 exec, 1
            buffer_atomic_add {v(vT2)}, {v(vDma)}, {s(rDb,4)}, {s(sT0)} offen offset:{4*word} sc1
            s_mov_b64 exec, -1""")
    def count_load(word):
        for k in range(4): a(f's_load_dword {s(sCt+k)}, {s(rDb,2)}, {64*k+4*word}')
    def count_ok():
        a(f"""s_add_u32 {s(sCt)}, {s(sCt)}, {s(sCt+1)}
        s_add_u32 {s(sCt+2)}, {s(sCt+2)}, {s(sCt+3)}
        s_add_u32 {s(sCt)}, {s(sCt)}, {s(sCt+2)}
        s_cmp_ge_u32 {s(sCt)}, 0x100""")
    def count_vload(word):
        a(f'v_and_b32 {v(vT3)}, 0xc0, {v(vDma)}\nbuffer_load_dword {v(vT3)}, {v(vT3)}, {s(rDb,4)}, 0 offen offset:{4*word} sc1')
    count_vck = lambda: a(f'v_cmp_gt_u32 vcc, 64, {v(vT3)}')
    def count_spin(lbl, word):
        stamp('spin%d' % word)
        spin(lbl, lambda: (a('s_sleep 2'), count_vload(word)), count_vck)
    def oproj_setup():
        a(f"""v_and_b32 {v(vT0)}, 15, {v(vLane)}
        v_lshrrev_b32 {v(vT1)}, 4, {v(vLane)}            ; g
        v_bfe_u32 {v(vT2)}, {v(vLane)}, 2, 2
        v_mul_u32_u24 {v(vT2)}, 160, {v(vT2)}
        v_and_b32 {v(vT3)}, 3, {v(vLane)}
        v_lshl_add_u32 {v(vT2)}, {v(vT3)}, 3, {v(vT2)}
        v_add_u32 {v(vT2)}, {WOL}, {v(vT2)}
        v_mul_u32_u24 {v(aWr)}, {80*160}, {v(vT1)}
        s_movk_i32 {s(sT1)}, {16*160}
        v_add3_u32 {v(aWr)}, {v(aWr)}, {v(vT2)}, {s(sT1)}
        v_lshrrev_b32 {v(vO)}, 1, {v(vT1)}               ; g/2
        v_and_b32 {v(vT3)}, 1, {v(vT1)}                  ; g%2
        v_mul_u32_u24 {v(aWn[0])}, {20*160}, {v(vO)}
        v_mul_u32_u24 {v(aWn[1])}, {4*160}, {v(vT3)}
        v_add3_u32 {v(aWn[0])}, {v(aWn[0])}, {v(aWn[1])}, {v(vT2)}
        v_add_u32 {v(aWn[1])}, 51200, {v(aWn[0])}
        s_and_b32 {s(sT1)}, {s(sW)}, 1
        s_lshl_b32 {s(sT1)}, {s(sT1)}, 4
        v_add_u32 {v(vT2)}, {s(sT1)}, {v(vT0)}
        v_mul_u32_u24 {v(vOb)}, 5120, {v(vT1)}
        v_lshl_add_u32 {v(vOb)}, {v(vT2)}, 3, {v(vOb)}
        v_mul_u32_u24 {v(vT0)}, 2560, {v(vT0)}
        v_lshl_add_u32 {v(vSt8)}, {v(vT1)}, 3, {v(vT0)}
        v_lshl_add_u32 {v(vT0)}, {v(vT3)}, 5, {v(vT0)}
        v_lshl_add_u32 {v(vSt)}, {v(vO)}, 4, {v(vT0)}
        v_lshlrev_b32 {v(vO)}, 9, {v(vT1)}
        v_lshl_add_u32 {v(vO)}, {v(vT2)}, 4, {v(vO)}
        v_bfe_u32 {v(vF)}, {v(vLane)}, 1, 3
        v_and_b32 {v(vT2)}, 1, {v(vLane)}
        v_lshlrev_b32 {v(vF)}, 9, {v(vF)}
        v_lshl_add_u32 {v(vF)}, {v(vT2)}, 7, {v(vF)}
        s_lshr_b32 {s(sT1)}, {s(sW)}, 1
        s_lshl_b32 {s(sT1)}, {s(sT1)}, 6
        v_add_u32 {v(vF)}, {s(sT1)}, {v(vF)}""")
    nset = [0]
    def s2_setup():
        n = nset[0]; nset[0] += 1
        t0, t1, t2, q = sT0, sT1, sT2, sT3
        a(f'''s_mul_i32 {s(q)}, {s(sI)}, 3
        s_add_u32 {s(q)}, {s(q)}, {s(sW)}
        s_sub_u32 {s(q)}, {s(q)}, 4
        s_mul_i32 {s(t0)}, {s(q)}, 3277
        s_lshr_b32 {s(t0)}, {s(t0)}, 16
        s_mul_i32 {s(t1)}, {s(t0)}, 20
        s_sub_u32 {s(sEt)}, {s(q)}, {s(t1)}
        s_lshl_b32 {s(sSlot)}, {s(sJ)}, 2
        s_add_u32 {s(sSlot)}, {s(sSlot)}, {s(t0)}
        s_mov_b32 {s(sJob)}, 1
        s_cmp_lt_u32 {s(q)}, 80
        s_cbranch_scc1 {L(f's2n{n}')}
        s_mul_i32 {s(t1)}, {s(sJ)}, 3
        s_add_u32 {s(sEt)}, {s(sEt)}, {s(t1)}
        s_mov_b32 {s(sSlot)}, 32
        s_cmp_lt_u32 {s(sEt)}, 20
        s_cselect_b32 {s(sJob)}, 1, 0
        s_cmp_lt_u32 {s(q)}, 83
        s_cselect_b32 {s(sJob)}, {s(sJob)}, 0
        s_cmp_eq_u32 {s(sJob)}, 0
        s_cbranch_scc1 {L(f's2z{n}')}
{L(f's2n{n}')}:
        s_lshr_b32 {s(t0)}, {s(sSlot)}, 1
        s_and_b32 {s(t0)}, {s(t0)}, 15
        s_and_b32 {s(t1)}, {s(sSlot)}, 1
        s_lshl_b32 {s(t2)}, {s(t1)}, 10
        s_add_u32 {s(t2)}, {s(t2)}, {s(t0)}
        s_cmp_eq_u32 {s(sSlot)}, 1
        s_cselect_b32 {s(t0)}, 16, {s(t0)}
        s_cselect_b32 {s(t2)}, 16, {s(t2)}
        s_cmp_eq_u32 {s(sSlot)}, 32
        s_cselect_b32 {s(t2)}, 0x400, {s(t2)}
        s_mul_i32 {s(sPC)}, {s(t0)}, 163840
        s_add_u32 {s(sPC)}, {s(sPC)}, {hex(WS_T)}
        v_and_b32 {v(vT0)}, 31, {v(vLane)}
        v_lshrrev_b32 {v(vT1)}, 5, {v(vLane)}
        v_lshl_add_u32 {v(vT2)}, {v(vT0)}, 5, {s(t2)}
        v_lshlrev_b32 {v(aR)}, 12, {v(vT2)}
        v_lshl_add_u32 {v(aR)}, {v(vT1)}, 4, {v(aR)}
        v_and_b32 {v(vT2)}, 0x13, {v(vT0)}
        v_bfe_u32 {v(aA)}, {v(vT0)}, 2, 1
        v_lshl_add_u32 {v(vT2)}, {v(aA)}, 3, {v(vT2)}
        v_bfe_u32 {v(aA)}, {v(vT0)}, 3, 1
        v_lshl_add_u32 {v(vT2)}, {v(aA)}, 2, {v(vT2)}
        s_lshl_b32 {s(t0)}, {s(sEt)}, 5
        v_add_u32 {v(vT2)}, {s(t0)}, {v(vT2)}
        v_sub_u32 {v(vT0)}, 0x280, {v(vT2)}
        v_min_u32 {v(vT2)}, {v(vT2)}, {v(vT0)}
        v_mul_u32_u24 {v(vT1)}, 20480, {v(vT1)}
        v_lshl_add_u32 {v(aA)}, {v(vT2)}, 3, {v(vT1)}
        v_add_u32 {v(aB)}, 2560, {v(aA)}
        v_subrev_u32 {v(vT2)}, 1, {v(vT2)}
        v_cmp_gt_u32 vcc, 319, {v(vT2)}
        v_mov_b32 {v(vT0)}, {hex(OOB)}
        s_nop 0
        v_cndmask_b32 {v(aB)}, {v(vT0)}, {v(aB)}, vcc
{L(f's2z{n}')}:''')


    a(kernel_head(name))
    a(f"""s_cmp_ge_u32 s2, 256
    s_cbranch_scc1 {L('end')}""")
    if diag:
        for k in range(1, NST): a(f's_mov_b32 {s(sTs+2*k)}, 0')
    stamp('start')
    def codepf():
        a(f"""s_getpc_b64 {s(sCt,2)}
{L('pc')}:
        s_lshl3_add_u32 {s(sT0)}, {s(sI)}, {s(sW)}
        s_lshl_b32 {s(sT0)}, {s(sT0)}, 8
        s_min_u32 {s(sT0)}, {s(sT0)}, {L('codeend')}-{L('pc')}-132
        s_add_u32 {s(sCt)}, {s(sCt)}, {s(sT0)}
        s_addc_u32 {s(sCt+1)}, {s(sCt+1)}, 0
        s_mov_b64 exec, 1
        v_mov_b32 v8, {s(sCt)}
        v_mov_b32 v9, {s(sCt+1)}
        global_load_dword v0, v[8:9], off
        global_load_dword v0, v[8:9], off offset:128""")
    pB = sA
    assert pB % 4 == 0
    a(f"""s_load_dwordx8 {s(pB,8)}, s[0:1], 40
    s_load_dwordx2 {s(rXA,2)}, s[0:1], 0
    v_lshrrev_b32 {v(vT0)}, 6, v0
    v_and_b32 {v(vLane)}, 63, v0
    v_readfirstlane_b32 {s(sW)}, {v(vT0)}
    v_lshlrev_b32 {v(vT3)}, 7, {v(vLane)}
    s_and_b32 {s(sJ)}, s2, 7
    s_lshr_b32 {s(sI)}, s2, 3
    s_lshl3_add_u32 {s(sT0)}, {s(sI)}, {s(sW)}       ; 8i + w
    s_lshl_b32 {s(sT1)}, {s(sJ)}, 8
    s_add_u32 {s(sT1)}, {s(sT1)}, {s(sT0)}
    s_mulk_i32 {s(sT1)}, 1280                        ; x_B row 256j + 8i + w
    v_add_u32 {v(vT0)}, {s(sT1)}, {v(vT3)}
    {f's_lshl_b32 {s(sT1)}, {s(sJ)}, 5' if wqrot else 's_nop 0'}
    {f's_xor_b32 {s(sT1)}, {s(sT1)}, {s(sT0)}' if wqrot else f's_mov_b32 {s(sT1)}, {s(sT0)}'}
    s_mulk_i32 {s(sT1)}, 3200
    v_add_u32 {v(vT1)}, {s(sT1)}, {v(vT3)}
    s_mov_b32 {s(sCnt)}, {s(sT1)}
    s_lshl3_add_u32 {s(sT1)}, {s(sI)}, {s(sJ)}
    s_lshl3_add_u32 {s(sT1)}, {s(sT1)}, {s(sW)}
    s_mulk_i32 {s(sT1)}, 1280                        ; x_A row 64i + 8j + w
    v_add_u32 {v(vT2)}, {s(sT1)}, {v(vT3)}
    s_min_u32 {s(sT0)}, {s(sT0)}, 199
    s_lshl_b32 {s(sT0)}, {s(sT0)}, 7
    v_mov_b32 {v(vT3)}, {s(sT0)}""")
    if cpf == 'pre': codepf()
    a('s_mov_b64 exec, 0x3ff')
    stamp('prearg')
    a('s_waitcnt lgkmcnt(0)')
    if touch:
        a(f"""global_load_dword v0, {v(vT0)}, {s(pB,2)}
        global_load_dword v0, {v(vT3)}, {s(pB+4,2)}
        global_load_dword v0, {v(vT3)}, {s(pB+6,2)}""")
        if 'noxa' not in dbg: a(f'global_load_dword v0, {v(vT2)}, {s(rXA,2)}')
        if 'nowq' not in dbg: a(f's_mov_b64 exec, {hex((1 << (25-spf))-1)}\nglobal_load_dword v0, {v(vT1)}, {s(pB+2,2)}')
    if cpf == 'post': codepf()
    a('s_mov_b64 exec, -1')
    for r, off in ((rWS,96),(rDb,88),(rRe,8),(rIm,16),(rWo,72),(rOut,80)):
        a(f's_load_dwordx2 {s(r,2)}, s[0:1], {off}')
    a(f's_mov_b32 {s(rXB+3)}, 0x20000')
    for k, r in enumerate((rXB, rWq, rWk, rWv)): a(f's_mov_b64 {s(r,2)}, {s(pB+2*k,2)}')
    for r in (rWk, rWv, rWq, rXA): a(f's_mov_b32 {s(r+3)}, {s(rXB+3)}')
    a(f"""s_mov_b32 {s(rXB+2)}, {hex(X_BYTES)}
    s_mov_b32 {s(rXA+2)}, {s(rXB+2)}
    s_movk_i32 {s(rWk+2)}, {hex(WKV_BYTES)}
    s_movk_i32 {s(rWv+2)}, {hex(WKV_BYTES)}
    s_mov_b32 {s(rWq+2)}, {hex(W_BYTES)}
    s_and_b32 {s(sHG)}, {s(sI)}, 7
    s_lshr_b32 {s(sPB)}, {s(sI)}, 3
    s_lshl2_add_u32 {s(sPB)}, {s(sJ)}, {s(sPB)}""")
    stamp('tiss')
    if 'tdone' in view:
        a('s_waitcnt vmcnt(0)'); stamp('tdone')
    for r, n in ((rWS,WS_SIZE),(rDb,256),(rRe,SEQ_BYTES),(rIm,SEQ_BYTES),(rWo,W_BYTES),(rOut,OUT_BYTES)):
        a(f's_mov_b32 {s(r+2)}, {hex(n)}\ns_mov_b32 {s(r+3)}, {s(rXB+3)}')
    a(f"""s_mov_b32 {s(sLo)}, -1
    s_mov_b32 {s(sLo+1)}, 0
    s_mov_b32 {s(sJob)}, 0
    v_lshlrev_b32 {v(vDma)}, 4, {v(vLane)}
    v_mov_b32 {v(aR)}, 2.0
    v_mov_b32 {v(aA)}, 2.0
    v_mov_b32 {v(aB)}, 2.0
    s_mov_b64 {s(sPC,2)}, 0""")
    lXB = [72, 73]; lXA = [74, 75]
    a(f"""v_lshrrev_b32 {v(vT0)}, 3, {v(vLane)}
    v_and_b32 {v(vT1)}, 7, {v(vLane)}
    v_lshrrev_b32 {v(vT2)}, 4, {v(vLane)}
    v_xor_b32 {v(vT1)}, {v(vT1)}, {v(vT2)}
    v_lshlrev_b32 {v(vT1)}, 4, {v(vT1)}
    v_xor_b32 {v(vT2)}, 64, {v(vT1)}
    s_movk_i32 {s(sT2)}, 1280
    s_mov_b32 {s(sT3)}, 81920
    v_mad_u32_u24 {v(lXB[0])}, {v(vT0)}, {s(sT2)}, {v(vT1)}
    v_mad_u32_u24 {v(lXB[1])}, {v(vT0)}, {s(sT2)}, {v(vT2)}
    v_mad_u32_u24 {v(lXA[0])}, {v(vT0)}, {s(sT3)}, {v(vT1)}
    v_mad_u32_u24 {v(lXA[1])}, {v(vT0)}, {s(sT3)}, {v(vT2)}
""")
    a(f"""s_getreg_b32 {s(sXcc)}, hwreg(HW_REG_XCC_ID, 0, 4)
    s_lshl3_add_u32 {s(sTag)}, {s(sPB)}, {s(sHG)}
    s_lshl3_add_u32 {s(sTag)}, {s(sTag)}, {s(sW)}
    s_lshl_b32 {s(sTag)}, {s(sTag)}, 6
    s_add_u32 {s(sTag)}, {s(sTag)}, {hex(WS_OF)}
    v_mov_b32 {v(vT3)}, {s(sXcc)}
    s_mov_b64 exec, 1
    s_waitcnt lgkmcnt(0)
    buffer_store_dword {v(vT3)}, {v(vDma)}, {s(rWS,4)}, {s(sTag)} offen sc1
    s_mov_b64 exec, -1""")
    if spf:
        a(f's_add_u32 {s(sCt)}, {s(rWq)}, {s(sCnt)}\ns_addc_u32 {s(sCt+1)}, {s(rWq+1)}, 0')
        for k in range(2*spf): a(f's_load_dword {s(sCt+2)}, {s(sCt,2)}, {(25-spf)*128 + 64*k}')
    attn_setup()
    for r in (242, 244, 246): a(f'v_pk_mov_b32 {v(r,2)}, {v(O,2)}, {v(O,2)}')
    if skipo: a(f"s_cmp_ge_u32 {s(sW)}, 4\ns_cbranch_scc1 {L('noop')}")
    oproj_setup()
    a(f"{L('noop')}:")
    a(f"""v_and_b32 {v(vT0)}, 15, {v(vLane)}
    v_lshrrev_b32 {v(vT1)}, 4, {v(vLane)}
    v_bfe_u32 {v(vT2)}, {v(vLane)}, 1, 3
    v_xor_b32 {v(vT2)}, {v(vT2)}, {v(vT1)}
    v_lshlrev_b32 {v(vT2)}, 4, {v(vT2)}
    v_lshl_add_u32 {v(vSp)}, {v(vT0)}, 7, {v(vT2)}
    s_cmp_ge_u32 {s(sW)}, 2
    s_cbranch_scc1 {L('notq')}""")
    assert (RING + R_XB) % 128 == 0 and (RING + R_XA) % 128 == 0 and SLOT % 128 == 0 and XKV % 128 == 0

    def bar(c):
        stamp(f'pre{c}'); a('s_barrier'); stamp(f'post{c}')
        if c == 0: stamp('bar0')
    def gemm_loop(rd, mm, need, mid=None, extra=None, early=False, last=10, defer=0):
        held = []
        for c in range(last):
            if not early: bar(c)
            if 'nocomp' not in dbg:
                rs = rd(c, 0) + rd(c, 1); n0 = len(rs)//2
                ms = [(x, need(k)) for k, x in enumerate(mm(c, 0))] + [(x, n0+need(k)) for k, x in enumerate(mm(c, 1))]
                if held:
                    iss = 0
                    for x in held:
                        for y in rs[iss:min(n0, iss+2)]: a(y)
                        iss = min(n0, iss+2)
                        a(x)
                    for y in rs[iss:n0]: a(y)
                    iss = n0
                else:
                    iss = min(len(rs), 12)
                    for y in rs[:iss]: a(y)
                done = 0
                if mid and c == 5: mid()
                nd_ = 0 if (c == 9 or (mid and c == 4)) else defer
                held = [x for x, nd in ms[len(ms)-nd_:]]
                for x, nd in ms[:len(ms)-nd_]:
                    if nd > done:
                        assert nd <= iss
                        a(f's_waitcnt lgkmcnt({iss-nd})'); done = nd
                    a(x)
                    for y in rs[iss:iss+2]: a(y)
                    iss = min(len(rs), iss+2)
                assert iss == len(rs)
                if done < len(rs): a('s_waitcnt lgkmcnt(0)')
            if extra: extra(c)
            if early: bar(c)
        return held
    def slot(c): return divmod(c % NSLOT, 2)
    kX = [76, 77]; kW = 78; gX = [[79, 80], [81, 82]]; gW = [83, 84]; xA = [85+i for i in range(10)]; t0, t1 = 96, 97; g0 = [72, 73]; pp0, pp1 = 98, 99
    a(f"""v_add_u32 {v(kX[0])}, {XKV}, {v(vSp)}
    v_xor_b32 {v(kX[1])}, 64, {v(kX[0])}
    s_lshl_b32 {s(sT0)}, {s(sW)}, 12
    s_add_u32 {s(sT0)}, {s(sT0)}, {RING+R_XB}
    v_add_u32 {v(gX[0][0])}, {s(sT0)}, {v(vSp)}
    v_xor_b32 {v(gX[0][1])}, 64, {v(gX[0][0])}
    v_add_u32 {v(gX[1][0])}, {2*SLOT}, {v(gX[0][0])}
    v_add_u32 {v(gX[1][1])}, {2*SLOT}, {v(gX[0][1])}
    s_movk_i32 {s(sT2)}, 2048
    s_mov_b32 {s(sT0)}, {RING+R_XB+2048}
    s_cmp_eq_u32 {s(sW)}, 0
    s_cselect_b32 {s(sT0)}, {XKV}, {s(sT0)}
    s_cselect_b32 {s(sD)}, {s(sT2)}, {SLOT}
    s_cselect_b32 {s(sE)}, {s(sT2)}, {-(NSLOT-1)*SLOT}
    v_add_u32 {v(g0[0])}, {s(sT0)}, {v(vSp)}
    v_xor_b32 {v(g0[1])}, 64, {v(g0[0])}
    v_bfe_u32 {v(vT2)}, {v(vLane)}, 2, 2             ; r
    v_and_b32 {v(vT3)}, 3, {v(vLane)}                ; c
    v_lshl_add_u32 {v(t0)}, {v(vT1)}, 3, {v(vT2)}
    v_mul_u32_u24 {v(t0)}, 40, {v(t0)}
    v_lshl_add_u32 {v(t0)}, {v(vT3)}, 3, {v(t0)}
    s_lshl_b32 {s(sT1)}, {s(sW)}, 5
    s_add_u32 {s(sT1)}, {s(sT1)}, {WKV}
    v_add_u32 {v(kW)}, {s(sT1)}, {v(t0)}
    v_and_b32 {v(t0)}, 1, {v(vT1)}
    v_lshl_add_u32 {v(vT2)}, {v(t0)}, 2, {v(vT2)}
    v_lshrrev_b32 {v(t0)}, 1, {v(vT1)}
    v_lshl_add_u32 {v(vT2)}, {v(t0)}, 4, {v(vT2)}    ; rho = 16(g/2)+4(g%2)+r
    v_mul_u32_u24 {v(vT2)}, 160, {v(vT2)}
    v_lshl_add_u32 {v(vT2)}, {v(vT3)}, 3, {v(vT2)}
    v_add_u32 {v(gW[0])}, {RING+R_WQ}, {v(vT2)}
    v_add_u32 {v(gW[1])}, {2*SLOT}, {v(gW[0])}
    s_lshr_b32 {s(sT0)}, {s(sHG)}, 2
    s_xor_b32 {s(sT0)}, {s(sT0)}, {s(sW)}
    s_mulk_i32 {s(sT0)}, 5120
    s_add_u32 {s(sT0)}, {s(sT0)}, {QX}
    s_and_b32 {s(sT1)}, {s(sHG)}, 2
    s_lshl_b32 {s(sT1)}, {s(sT1)}, 3
    v_add_u32 {v(pp0)}, {s(sT1)}, {v(vT0)}
    v_xor_b32 {v(pp1)}, 16, {v(pp0)}
    v_lshlrev_b32 {v(vT3)}, 3, {v(vT1)}""")
    for m in range(5):
        tb = sh = 0
        for g in range(4):
            hh, dg = divmod(4*m+g, 5)
            base = hh*1280 + (1024 if dg == 4 else (dg % 2)*512)
            code = (base//256) | ((dg//2 if dg < 4 else 0) << 5) | ((1 if dg < 4 else 0) << 6)
            tb |= code << (8*g)
        a(f"""s_mov_b32 {s(sT1)}, {hex(tb)}
        v_lshrrev_b32 {v(vT2)}, {v(vT3)}, {s(sT1)}
        v_and_b32 {v(t0)}, 31, {v(vT2)}
        v_lshl_add_u32 {v(t0)}, {v(t0)}, 8, {s(sT0)}
        v_bfe_u32 {v(t1)}, {v(vT2)}, 5, 1
        v_lshl_add_u32 {v(t0)}, {v(t1)}, 3, {v(t0)}
        v_bfe_u32 {v(t1)}, {v(vT2)}, 6, 1
        v_add_u32 {v(t1)}, 3, {v(t1)}
        v_lshl_add_u32 {v(xA[2*m])}, {v(pp0)}, {v(t1)}, {v(t0)}
        v_lshl_add_u32 {v(xA[2*m+1])}, {v(pp1)}, {v(t1)}, {v(t0)}""")
    a(f"""s_lshr_b32 {s(sA)}, {s(sPB)}, 1
    s_mul_i32 {s(sA)}, {s(sA)}, 10240
    s_and_b32 {s(sB)}, {s(sPB)}, 1
    s_lshr_b32 {s(sC)}, {s(sHG)}, 1
    s_lshl2_add_u32 {s(sB)}, {s(sB)}, {s(sC)}
    s_bitcmp0_b32 {s(sHG)}, 0
    s_cbranch_scc0 {L('vjob')}""")
    def kvjob(isv):
        acc = [96, 100]; NB = 5; Xf = [104+8*b for b in range(NB)]; Wf = [108+8*b for b in range(NB)]
        def rd(st):
            b = st % NB
            a(f'ds_read_b128 {v(Xf[b],4)}, {v(kX[st%2])} offset:{(st//2)*2048}')
            for r in range(2): a(f'ds_read_b64_tr_b16 {v(Wf[b]+2*r,2)}, {v(kW)} offset:{(32*st+4*r)*40}')
        a('s_waitcnt lgkmcnt(0)\ns_barrier')
        stamp('kvbar')
        for st in range(NB-1): rd(st)
        for st in range(20):
            if st+NB-1 < 20: rd(st+NB-1)
            a(f's_waitcnt lgkmcnt({3*min(NB-1, 19-st)})')
            A, B = (Xf[st%NB], Wf[st%NB]) if isv else (Wf[st%NB], Xf[st%NB])
            a(f'v_mfma_f32_16x16x32_bf16 {v(acc[0],4)}, {v(A,4)}, {v(B,4)}, {"0" if st == 0 else v(acc[0],4)}')
        pk = 104
        if not isv:
            a(f"""s_lshr_b32 {s(sT0)}, {s(sB)}, 1
            s_lshl_b32 {s(sT0)}, {s(sT0)}, 10
            s_and_b32 {s(sT1)}, {s(sB)}, 1
            s_lshl_b32 {s(sT1)}, {s(sT1)}, 8
            s_add_u32 {s(sT0)}, {s(sT0)}, {s(sT1)}
            s_add_u32 {s(sT0)}, {s(sT0)}, {s(sA)}
            s_lshl_b32 {s(sT1)}, {s(sB)}, 7
            s_add_u32 {s(sT1)}, {s(sT1)}, {s(sA)}
            s_add_u32 {s(sT1)}, {s(sT1)}, 4096
            v_mul_f32 {v(acc[0])}, {fhex(QSCALE)}, {v(acc[0])}
            v_mul_f32 {v(acc[0]+1)}, {fhex(QSCALE)}, {v(acc[0]+1)}
            v_mul_f32 {v(acc[0]+2)}, {fhex(QSCALE)}, {v(acc[0]+2)}
            v_mul_f32 {v(acc[0]+3)}, {fhex(QSCALE)}, {v(acc[0]+3)}
            v_cvt_pk_bf16_f32 {v(pk)}, {v(acc[0])}, {v(acc[0]+1)}
            v_cvt_pk_bf16_f32 {v(pk+1)}, {v(acc[0]+2)}, {v(acc[0]+3)}
            s_cmp_eq_u32 {s(sW)}, 0
            s_cbranch_scc1 {L('kajob')}
            s_mov_b64 exec, 0xffff
            buffer_store_dwordx2 {v(pk,2)}, {v(aKb[0])}, {s(rWS,4)}, {s(sT1)} offen sc1
            s_branch {L('kvdone')}
{L('kajob')}:
            v_mov_b32 {v(pk+2)}, {v(pk)}
            v_mov_b32 {v(pk+3)}, {v(pk+1)}
            v_lshlrev_b32 {v(vT2)}, 9, {v(vT1)}
            v_lshl_add_u32 {v(vT2)}, {v(vT0)}, 4, {v(vT2)}
            v_permlane32_swap_b32 {v(pk)}, {v(pk+2)}
            v_permlane32_swap_b32 {v(pk+1)}, {v(pk+3)}
            s_mov_b64 exec, {s(sLo,2)}
            buffer_store_dwordx4 {v(pk,4)}, {v(vT2)}, {s(rWS,4)}, {s(sT0)} offen sc1""")
        else:
            a(f"""s_mul_i32 {s(sT0)}, {s(sB)}, 640
            s_add_u32 {s(sT0)}, {s(sT0)}, {s(sA)}
            s_lshl_b32 {s(sT2)}, {s(sW)}, 8
            s_add_u32 {s(sT0)}, {s(sT0)}, {s(sT2)}
            s_mov_b32 {s(sT1)}, {fhex(VSCALE)}
            s_cmp_eq_u32 {s(sW)}, 0
            s_cselect_b32 {s(sT2)}, 0xffff, 15
            s_nop 1""")
            for i in range(4): a(f'v_mul_f32 {v(acc[0]+i)}, {s(sT1)}, {v(acc[0]+i)}')
            for k in range(4): a(f'v_cvt_pk_bf16_f32 {v(pk+k)}, {v(acc[0]+2*(k%2))}, {v(acc[0]+2*(k%2)+1)}')
            a(f"""s_nop 1
            v_permlane16_swap_b32 {v(pk)}, {v(pk+2)}
            v_permlane16_swap_b32 {v(pk+1)}, {v(pk+3)}
            s_mov_b32 exec_lo, {s(sT2)}
            s_mov_b32 exec_hi, {s(sT2)}
            buffer_store_dwordx4 {v(pk,4)}, {v(aV[0])}, {s(rWS,4)}, {s(sT0)} offen sc1""")
    kvjob(False)
    a(f"s_branch {L('kvdone')}\n{L('vjob')}:")
    kvjob(True)
    a(f"""{L('kvdone')}:
    s_mov_b64 exec, -1""")
    accQ = [[96+20*rt+4*m for m in range(5)] for rt in range(2)]
    XfQ = [[136+28*p+4*rt for rt in range(2)] for p in range(2)]
    WfQ = [[144+28*p+4*m for m in range(5)] for p in range(2)]
    def rdQ(c, p):
        st, o = slot(c); o *= SLOT
        r = [f'ds_read_b128 {v(XfQ[p][0],4)}, {v(g0[p])}', f'ds_read_b128 {v(XfQ[p][1],4)}, {v(gX[st][p])} offset:{o}']
        for m in range(5):
            for k in range(2): r.append(f'ds_read_b64_tr_b16 {v(WfQ[p][m]+2*k,2)}, {v(gW[st])} offset:{o+(32*p+8*k)*160+32*m}')
        return r
    def mmQ(c, p):
        return [f'v_mfma_f32_16x16x32_bf16 {v(accQ[rt][m],4)}, {v(WfQ[p][m],4)}, {v(XfQ[p][rt],4)}, {"0" if (c,p)==(0,0) else v(accQ[rt][m],4)}'
                for m in range(5) for rt in range(2)]
    def qextra(c):
        if c == kvflag-1: a('s_waitcnt vmcnt(0)')
        for p in range(2 if c < 9 else 0): a(f'v_add_u32 {v(g0[p])}, {s(sE if c % NSLOT == NSLOT-1 else sD)}, {v(g0[p])}')
    held = gemm_loop(rdQ, mmQ, lambda k: min(12, 6 + 4*(k//4)), defer=dfq, extra=qextra,
              last=9 if qtail else 10)
    def qout(m, rt):
        d = accQ[rt][m]; k = 192 + 2*(2*m+rt)
        return [f'v_cvt_pk_bf16_f32 {v(k)}, {v(d)}, {v(d+1)}', f'v_cvt_pk_bf16_f32 {v(k+1)}, {v(d+2)}, {v(d+3)}', f'ds_write_b64 {v(xA[2*m+rt])}, {v(k,2)}']
    if qtail:
        bar(9)
        r0, r1, m0_, m1 = rdQ(9, 0), rdQ(9, 1), mmQ(9, 0), mmQ(9, 1)
        rs = r0[:4] + r1[:4] + [x for m in range(1, 5) for x in r0[2+2*m:4+2*m] + r1[2+2*m:4+2*m]]
        for y in rs[:4] + held + rs[4:12]: a(y)
        iss = 12; pend = []
        for m in range(5):
            if m < 3: a(f's_waitcnt lgkmcnt({0 if m == 2 else iss - (8+4*m)})')
            if m >= 2: pend += qout(m-2, 0) + qout(m-2, 1)
            for x in m0_[2*m:2*m+2] + m1[2*m:2*m+2]:
                a(x)
                for y in rs[iss:iss+2]: a(y)
                iss = min(len(rs), iss+2)
                for y in pend[:2]: a(y)
                pend = pend[2:]
        stamp('gemm')
        for y in qout(3, 0) + qout(3, 1) + ['s_nop 0'] + qout(4, 0) + qout(4, 1): a(y)
    else:
        stamp('gemm')
        for m in range(5):
            for rt in range(2):
                for y in qout(m, rt): a(y)
    a(f"s_waitcnt lgkmcnt(0)\ns_branch {L('attn')}")

    a(f"""{L('notq')}:
    s_cmp_ge_u32 {s(sW)}, 4
    s_cbranch_scc0 {L('h2')}
    s_cmp_eq_u32 {s(sW)}, 7
    s_cbranch_scc1 {L('w7')}
    s_cmp_eq_u32 {s(sW)}, 6
    s_cbranch_scc1 {L('h1')}""")
    lW = [76+q for q in range(5)]; lB = [81+i for i in range(4)]; lA = [85+i for i in range(4)]
    sLW = sF
    a(f"""s_sub_u32 {s(sLW)}, {s(sW)}, 4
    s_movk_i32 {s(sT1)}, 6554
    s_movk_i32 {s(sT2)}, 1280""")
    for q in range(5):
        a(f"""v_add_u32 {v(vT0)}, {64*q}, {v(vLane)}
        v_mul_u32_u24 {v(vT1)}, {s(sT1)}, {v(vT0)}
        v_lshrrev_b32 {v(vT1)}, 16, {v(vT1)}             ; rho
        v_mul_u32_u24 {v(vT2)}, 10, {v(vT1)}
        v_sub_u32 {v(vT0)}, {v(vT0)}, {v(vT2)}           ; piece
        v_and_b32 {v(vT2)}, 0x13, {v(vT1)}
        v_bfe_u32 {v(vT3)}, {v(vT1)}, 2, 1
        v_lshl_add_u32 {v(vT2)}, {v(vT3)}, 3, {v(vT2)}
        v_bfe_u32 {v(vT3)}, {v(vT1)}, 3, 1
        v_lshl_add_u32 {v(vT2)}, {v(vT3)}, 2, {v(vT2)}   ; k
        v_lshlrev_b32 {v(vT0)}, 4, {v(vT0)}
        v_mad_u32_u24 {v(lW[q])}, {v(vT2)}, {s(sT2)}, {v(vT0)}""")
        if 0 < q < 4: a(f'v_subrev_u32 {v(lW[q])}, {1024*q}, {v(lW[q])}')
    for i in range(4):
        a(f'v_add_u32 {v(lA[i])}, {i*(8*81920-1024)}, {v(lXA[i%2])}')
    for i in range(3):
        a(f"""s_mul_i32 {s(sT0)}, {s(sLW)}, 3
        s_add_u32 {s(sT0)}, {s(sT0)}, {2+i}
        s_and_b32 {s(sT1)}, {s(sT0)}, 1
        s_lshl_b32 {s(sT1)}, {s(sT1)}, 6
        v_xor_b32 {v(lB[i])}, {s(sT1)}, {v(lXB[0])}
        s_and_b32 {s(sT1)}, {s(sHG)}, 6
        s_xor_b32 {s(sT0)}, {s(sT0)}, {s(sT1)}
        s_mulk_i32 {s(sT0)}, {8*1280}
        v_add_u32 {v(lB[i])}, {s(sT0)}, {v(lB[i])}""")
    s2_setup()
    a(f"""s_and_b32 {s(sA)}, {s(sHG)}, 6
    s_add_u32 {s(sA)}, {s(sA)}, {s(sLW)}
    s_lshl3_add_u32 {s(sA)}, {s(sPB)}, {s(sA)}
    s_mul_i32 {s(sA)}, {s(sA)}, {8*1280}
    s_lshl_b32 {s(sB)}, {s(sLW)}, 6
    v_xor_b32 {v(vT0)}, {s(sB)}, {v(lXB[0])}
    s_lshl_b32 {s(sB)}, {s(sLW)}, 10
    s_mul_i32 {s(sC)}, {s(sLW)}, {12*1024}
    s_bitcmp0_b32 {s(sHG)}, 0
    s_cselect_b32 {s(rWk)}, {s(rWk)}, {s(rWv)}
    s_cselect_b32 {s(rWk+1)}, {s(rWk+1)}, {s(rWv+1)}""")
    stamp('ldgo')
    for c in range(10):
        a(f"""s_add_u32 m0, {s(sB)}, {XKV+c*2048}
        s_add_u32 {s(sT0)}, {s(sA)}, {c*128}
        buffer_load_dwordx4 {v(vT0)}, {s(rXB,4)}, {s(sT0)} offen {ntB} lds""")
    for n in range(13):
        if n % 4 == 0: a(f's_add_u32 m0, {s(sC)}, {WKV+n*1024}\ns_add_u32 {s(sT0)}, {s(sC)}, {n*1024}')
        a(f'buffer_load_dwordx4 {v(vDma)}, {s(rWk,4)}, {s(sT0)} offen offset:{(n%4)*1024} lds')
    a(f"""s_lshl1_add_u32 {s(sT0)}, {s(sPB)}, {s(sLW)}
    s_mul_i32 {s(sA)}, {s(sPB)}, {64*1280}           ; x_B rows
    s_mul_i32 {s(sM)}, {s(sLW)}, 3072
    s_mul_i32 {s(sB)}, {s(sT0)}, 1280                ; x_A s2
    s_mul_i32 {s(sC)}, {s(sLW)}, {32*1280}
    s_mul_i32 {s(sT0)}, {s(sHG)}, 160
    s_add_u32 {s(sC)}, {s(sC)}, {s(sT0)}             ; wq
    s_lshl_b32 {s(sD)}, {s(sLW)}, 12
    s_mul_i32 {s(sE)}, {s(sLW)}, 5120""")
    def stage(c):
        o = RING + (c % NSLOT)*SLOT
        r = []
        if 'noload' in dbg and c >= 2: return r
        if c >= 0:
            for i in range(3):
                r.append(f's_add_u32 m0, {s(sM)}, {o+R_XB+1024*i}\ns_add_u32 {s(sT0)}, {s(sA)}, {c*128}')
                r.append(f'buffer_load_dwordx4 {v(lB[i])}, {s(rXB,4)}, {s(sT0)} offen {ntB} lds')
            r.append(f's_add_u32 m0, {s(sE)}, {o+R_WQ+4096}\ns_add_u32 {s(sT0)}, {s(sC)}, {c*64*1280}')
            r.append(f'buffer_load_dwordx4 {v(lW[4])}, {s(rWq,4)}, {s(sT0)} offen lds')
            r.append(f's_add_u32 m0, {s(sE)}, {o+R_WQ}\ns_nop 0')
            r += [f'buffer_load_dwordx4 {v(lW[q])}, {s(rWq,4)}, {s(sT0)} offen offset:{1024*q} lds' for q in range(4)]
        if c < 9:
            r.append(f's_add_u32 m0, {s(sD)}, {o+R_XA}\ns_add_u32 {s(sT0)}, {s(sB)}, {((c+6) % 10)*128}')
            r += [f'buffer_load_dwordx4 {v(lA[i])}, {s(rXA,4)}, {s(sT0)} offen offset:{1024*i} {ntB} lds' for i in range(4)]
        return r
    flat = [(c, x) for c in range(-1, 10) for x in stage(c)]
    isld = lambda x: x.startswith('buffer')
    p = 0; nb = -1
    while nb < 10:
        after = lambda: sum(1 for c, x in flat[:p] if c > nb and isld(x))
        while p < len(flat) and (flat[p][0] <= nb or (after() < (lead0 if nb < 0 else leads[nb] if nb < len(leads) else lead) and flat[p][0] <= nb + NSLOT - 2)):
            a(flat[p][1]); p += 1
        a(f's_waitcnt vmcnt({after()})' + (' lgkmcnt(0)' if nb == -1 else ''))
        stamp(f'pre{nb}'); a('s_barrier'); stamp(f'post{nb}')
        if nb == -1: stamp('kvbar')
        if nb == 0: stamp('bar0')
        nb += 1
    stamp('gemm')
    a(f"s_branch {L('attn')}")

    a(f"{L('w7')}:")
    if diag == 'start':
        a(f'''s_lshl_b32 {s(sT0)}, s2, 9
        s_add_u32 {s(sT0)}, {s(sT0)}, {hex(WS_DIAG+7*64)}
        v_mov_b32 {v(vT0)}, {s(sTs)}
        s_mov_b64 exec, 1
        buffer_store_dword {v(vT0)}, {v(vDma)}, {s(rWS,4)}, {s(sT0)} offen sc1
        s_mov_b64 exec, -1''')
    def kv_first(n0, n1):
        assert kv0*8192 <= XKV
        if n0 == 0 and kvtouch:
            a(f"""s_mul_i32 {s(sB)}, {s(sI)}, 5120
            v_min_u32 {v(vT0)}, 39, {v(vLane)}
            v_lshlrev_b32 {v(vT0)}, 7, {v(vT0)}
            buffer_load_dword v0, {v(vT0)}, {s(rWS,4)}, {s(sB)} offen sc1""")
        for n in range(n0, n1):
            if n % 4 == 0: a(f's_mov_b32 m0, {n*1024}\ns_mov_b32 {s(sB)}, {n*1024}')
            a(f'buffer_load_dwordx4 {v(vDma)}, {s(rWS,4)}, {s(sB)} offen offset:{(n%4)*1024} sc1 lds')
    a('s_waitcnt lgkmcnt(0)\ns_barrier')
    stamp('kvbar')
    for c in range(pollA+1):
        a('s_barrier')
        if c == 0: stamp('bar0')
        if c == kvflag: count_add(0, scalar=True)
    stamp('c0')
    count_load(0)
    a('s_waitcnt lgkmcnt(0)')
    stamp('c1')
    count_ok()
    a(f"s_cbranch_scc0 {L('kvlate')}")
    kv_first(0, 16)
    for c in range(pollA+1, 10): a('s_barrier')
    a(f"s_branch {L('kvgot')}\n{L('kvlate')}:")
    for c in range(pollA+1, 10): a('s_barrier')
    count_spin('kvp', 0)
    kv_first(0, 16)
    a(f"{L('kvgot')}:")
    kv_first(16, 8*kv0)
    stamp('gemm')
    a(f"s_waitcnt vmcnt({8*(kv0-kvw)})\ns_branch {L('attn')}")

    TK = 184
    def tstores():
        a(f"""s_bitcmp1_b32 0x4c, {s(sW)}
        s_cbranch_scc0 {L('tsx')}""")
        for m in (0, 1):
            if m: a(f"s_cmp_eq_u32 {s(sW)}, 6\ns_cbranch_scc1 {L('tsx')}")
            for kk in range(2):
                a(f'buffer_store_dwordx4 {v(TK+16*m+4*kk,4)}, {v(vSp)}, {s(rWS,4)}, {s(sC)} offen offset:{128*m+64*kk} sc1')
            a(f"""s_mov_b32 exec_lo, 0x30003
            s_mov_b32 exec_hi, 0x30003
            buffer_store_dwordx4 {v(TK+16*m+12,4)}, {v(vT3)}, {s(rWS,4)}, {s(sD)} offen offset:{128*m} sc1
            s_mov_b64 exec, -1""")
        a(f"{L('tsx')}:")
    def hwave(nt):
        W = [72+40*m for m in range(nt)]
        acc = [[152+16*m+4*rt for rt in range(4)] for m in range(nt)]
        Xf = [[184+16*p+4*rt for rt in range(4)] for p in range(2)]
        Fm = [248, 252]
        hX = [[232, 233], [234, 235]]
        vSg = 236
        assert vSg % 2 == 0
        vEf = 184; vBs = 185; vK = 186; ta = 188; tb = 196
        a(f"""s_and_b32 {s(sA)}, {s(sHG)}, 3
        s_mulk_i32 {s(sA)}, 80""")
        if nt == 2: a(f's_and_b32 {s(sB)}, {s(sW)}, 1\ns_lshl_b32 {s(sB)}, {s(sB)}, 5')
        else: a(f's_mov_b32 {s(sB)}, 64')
        a(f"""s_add_u32 {s(sA)}, {s(sA)}, {s(sB)}              ; first e
        s_cmp_ge_u32 {s(sHG)}, 4
        s_cselect_b32 {s(sC)}, {fhex(0.25)}, 0
        s_cselect_b32 {s(sD)}, 0, -1
        v_lshlrev_b32 {v(vT2)}, 3, {v(vT1)}
        v_cvt_f32_u32 {v(vT2)}, {v(vT2)}""")
        vCol = 187
        a(f"""v_bfe_u32 {v(vCol)}, {v(vT0)}, 1, 1
        v_and_b32 {v(vT3)}, 1, {v(vT0)}
        v_lshl_add_u32 {v(vCol)}, {v(vCol)}, 3, {v(vT3)}
        v_lshrrev_b32 {v(vT3)}, 2, {v(vT0)}
        v_lshl_add_u32 {v(vCol)}, {v(vT3)}, 1, {v(vCol)}""")
        for m in range(nt):
            a(f"""v_add_u32 {v(vT3)}, {s(sA)}, {v(vCol)}
            v_add_u32 {v(vT3)}, {16*m}, {v(vT3)}
            v_cmp_eq_u32 vcc, {s(sD)}, {v(vT3)}
            v_cvt_f32_u32 {v(vEf)}, {v(vT3)}
            v_mul_f32 {v(vEf)}, {fhex(1/640)}, {v(vEf)}
            v_mov_b32 {v(vBs)}, {s(sC)}
            v_cndmask_b32 {v(vEf)}, {v(vEf)}, 0.5, vcc
            v_cndmask_b32 {v(vBs)}, {v(vBs)}, 0, vcc
            v_mul_f32 {v(vK)}, {fhex(32.0)}, {v(vEf)}
            v_cos_f32 {v(vK)}, {v(vK)}
            v_fmac_f32 {v(vBs)}, {v(vEf)}, {v(vT2)}
            v_add_f32 {v(vK)}, {v(vK)}, {v(vK)}""")
            for st in range(10):
                t = ta if st % 2 == 0 else tb; u = tb if st % 2 == 0 else ta
                if st < 2:
                    for i in range(8): a(f'v_fmamk_f32 {v(t+i)}, {v(vEf)}, {fhex(float(32*st+i))}, {v(vBs)}')
                    for i in range(8): a(f'v_cos_f32 {v(t+i)}, {v(t+i)}')
                else:
                    for i in range(0, 8, 2):
                        a(f'v_pk_fma_f32 {v(t+i,2)}, {v(u+i,2)}, {v(vK,2)}, {v(t+i,2)} op_sel_hi:[1,0,1] neg_lo:[0,0,1] neg_hi:[0,0,1]')
                for i in range(4): a(f'v_cvt_pk_bf16_f32 {v(W[m]+4*st+i)}, {v(t+2*i)}, {v(t+2*i+1)}')
        a(f"""v_add_u32 {v(hX[0][0])}, {RING+R_XA}, {v(vSp)}
        v_xor_b32 {v(hX[0][1])}, 64, {v(hX[0][0])}
        v_add_u32 {v(hX[1][0])}, {2*SLOT}, {v(hX[0][0])}
        v_add_u32 {v(hX[1][1])}, {2*SLOT}, {v(hX[0][1])}""")
        F16 = 216
        def late():
            e, b, t = 228, 229, 220
            a(f"""v_mul_f32 {v(vT2)}, 0.5, {v(vT2)}
            v_cvt_f32_u32 {v(e)}, {v(vT0)}
            v_mul_f32 {v(e)}, {fhex(1/32)}, {v(e)}
            v_fma_f32 {v(b)}, {v(e)}, {v(vT2)}, {s(sC)}""")
            for hf in range(2):
                if hf == 1: a(f'v_add_f32 {v(b)}, {fhex(-0.25)}, {v(b)}')
                for i in range(8): a(f'v_fmamk_f32 {v(t+i)}, {v(e)}, {fhex(float(16*(i//4)+i%4))}, {v(b)}')
                for i in range(8): a(f'v_cos_f32 {v(t+i)}, {v(t+i)}')
                for i in range(4): a(f'v_cvt_pk_bf16_f32 {v(Fm[hf]+i)}, {v(t+2*i)}, {v(t+2*i+1)}')
            for i in range(4): a(f'v_mov_b32 {v(F16+i)}, 0xbf803f80')
            a(f"""v_lshlrev_b32 {v(vSg)}, 31, {v(vLane)}
            v_or_b32 {v(vSg)}, 1.0, {v(vSg)}                 ; (-1)^e
            s_mov_b32 {s(sT1)}, 163840
            v_lshlrev_b32 {v(vT2)}, 4, {v(vT1)}
            v_mad_u32_u24 {v(vSp)}, {v(vT0)}, {s(sT1)}, {v(vT2)}
            v_lshl_add_u32 {v(vT3)}, {v(vT0)}, 6, {v(vT2)}
            s_cmp_eq_u32 {s(sA)}, {s(sD)}
            s_cselect_b32 {s(sM)}, 0xffff, 0
            s_mov_b32 {s(sM+1)}, 0
            s_mov_b32 {s(sE)}, {s(sD)}
            s_mov_b32 {s(sF)}, {s(sD)}
            s_mul_i32 {s(sC)}, {s(sHG)}, 80
            s_add_u32 {s(sC)}, {s(sC)}, {s(sB)}
            s_lshl_b32 {s(sC)}, {s(sC)}, 3
            s_mul_i32 {s(sT1)}, {s(sPB)}, 5120
            s_add_u32 {s(sC)}, {s(sC)}, {s(sT1)}
            s_add_u32 {s(sC)}, {s(sC)}, {hex(WS_T)}
            s_add_u32 {s(sD)}, {s(sC)}, {16*163840}
            s_and_b32 {s(sA)}, {s(sM)}, 1
            s_or_b32 {s(sA)}, {s(sA)}, {s(sE)}
            s_mov_b32 {s(sB)}, {s(sF)}""")
        def late2():
            if nt == 1: s2_setup()
            a('s_mov_b32 vcc_lo, 0x20002\ns_mov_b32 vcc_hi, 0x20002')
        lt = hlate[2-nt]
        if lt[0] < 0: late()
        if lt[1] < 0: late2()
        def hextra(c):
            if c == lt[0]: late()
            if c == lt[1]: late2()
        assert sE % 2 == 0 and sF == sE+1 and sA % 2 == 0 and sB == sA+1
        stamp('ldgo')
        a('s_waitcnt lgkmcnt(0)\ns_barrier')
        stamp('kvbar')
        def rdH(c, p):
            st, o = slot(c-1)
            return [f'ds_read_b128 {v(Xf[p][rt],4)}, {v(hX[st][p])} offset:{o*SLOT+rt*2048}' for rt in range(4)]
        def mmH(c, p):
            return [f'v_mfma_f32_16x16x32_bf16 {v(acc[m][rt],4)}, {v(Xf[p][rt],4)}, {v(W[m]+4*(2*(c%5)+p),4)}, {"0" if (c,p)==(0,0) else v(acc[m][rt],4)}'
                    for rt in range(4) for m in range(nt)]
        def mid():
            a('s_nop 0')
            for rt in range(4):
                for m in range(nt):
                    for i in (0, 2): a(f'v_pk_mul_f32 {v(acc[m][rt]+i,2)}, {v(acc[m][rt]+i,2)}, {v(vSg,2)} op_sel_hi:[1,0]')
            a('s_nop 1')
        gemm_loop(rdH, mmH, lambda k: 2 + 2*(k//(2*nt)), mid, extra=hextra, early=True, defer=dfh*nt)
        stamp('gemm')
        a('s_nop 7')
        Hf = 72; D2 = 88
        for m in range(nt):
            for rt in range(4):
                for i in range(2): a(f'v_cvt_pk_bf16_f32 {v(Hf+8*m+2*rt+i)}, {v(acc[m][rt]+2*i)}, {v(acc[m][rt]+2*i+1)}')
            a('s_nop 1')
            for hf in range(3):
                for s2 in range(2):
                    a(f'v_mfma_f32_16x16x32_bf16 {v(D2+24*m+8*hf+4*s2,4)}, {v(Hf+8*m+4*s2,4)}, {v((Fm+[F16])[hf],4)}, 0')
        a(f's_nop {5 if nt == 1 else 0}')
        for m in range(nt):
            d = D2+24*m; k = TK+16*m
            for i in range(4):
                for hf in range(2): a(f'v_cvt_pk_bf16_f32 {v(k+2*i+hf)}, {v(d+8*hf+i)}, {v(d+8*hf+4+i)}')
            if m == 0 and nt == 2:
                a(f"""v_xor_b32 {v(vT2)}, 0x80008000, {v(k)}
                v_cndmask_b32 {v(k)}, {v(k)}, {v(k+1)}, {s(sM,2)}
                v_cndmask_b32 {v(k+1)}, {v(k+1)}, {v(vT2)}, {s(sM,2)}""")
            x = k+8
            for i in range(4): a(f'v_cvt_pk_bf16_f32 {v(x+i)}, {v(d+16+i)}, {v(d+20+i)}')
            mk = s(sA,2) if m == 0 else s(sE,2)
            a(f"""v_cndmask_b32 {v(x)}, {v(x)}, {v(x+2)}, vcc
            v_cndmask_b32 {v(x+1)}, {v(x+1)}, {v(x+3)}, vcc
            v_cndmask_b32 {v(x+4)}, 0, {v(x)}, {mk}
            v_cndmask_b32 {v(x+5)}, {v(x)}, 0, {mk}
            v_cndmask_b32 {v(x+6)}, 0, {v(x+1)}, {s(sE,2)}
            v_cndmask_b32 {v(x+7)}, {v(x+1)}, 0, {s(sE,2)}""")
    a(f"{L('h1')}:")
    hwave(1)
    a(f"s_branch {L('attn')}\n{L('h2')}:")
    hwave(2)

    a(f'''{L('attn')}:
    s_and_b32 {s(sT0)}, {s(sW)}, 1
    s_lshr_b32 {s(sT1)}, {s(sW)}, 1
    s_lshl2_add_u32 {s(sT0)}, {s(sT0)}, {s(sT1)}
    s_mulk_i32 {s(sT0)}, 1280
    s_add_u32 {s(sT0)}, {s(sT0)}, {QX}
    v_add_u32 {v(vT0)}, {s(sT0)}, {v(vDma)}
    v_and_b32 {v(vT1)}, 0xff, {v(aKb[0])}
    v_add_u32 {v(vT1)}, {s(sT0)}, {v(vT1)}''')
    if tspos == -1: tstores()
    stamp('preA')
    a('s_barrier')
    stamp('barA')
    assert kv0 == 4
    def dma(r):
        a(f's_add_u32 m0, {s(sDma)}, {r*32768}\ns_add_u32 {s(sT0)}, {s(sDma)}, {r*32768}')
        for k in range(4): a(f'buffer_load_dwordx4 {v(vDma)}, {s(rWS,4)}, {s(sT0)} offen offset:{k*1024} sc1 lds')
    def wodma(blk):
        if 'nowo' in dbg: return
        a(f's_add_u32 m0, {s(sWoL)}, {blk*5120+4096}\ns_add_u32 {s(sT0)}, {s(sWoS)}, {blk*32*1280}')
        a(f'buffer_load_dwordx4 {v(vWa[4])}, {s(rWo,4)}, {s(sT0)} offen lds')
        a(f's_add_u32 m0, {s(sWoL)}, {blk*5120}\ns_nop 0')
        for q in range(4): a(f'buffer_load_dwordx4 {v(vWa[q])}, {s(rWo,4)}, {s(sT0)} offen offset:{q*1024} lds')
    def rdKa(dst, t):
        u, tt = divmod(t, 4); b, uu = divmod(u, 6)
        a(f'ds_read_b128 {v(dst,4)}, {v(aK[b])} offset:{uu*10240 + tt*1024}')
    def rdKb(u):
        b, uu = divmod(u, 8)
        a(f'ds_read2st64_b64 {v(Kb[u%2],4)}, {v(aKb[b])} offset0:{uu*20+8} offset1:{uu*20+9}')
    def rdV(dst, t, f):
        u, tt = divmod(t, 4); b, uu = divmod(u, 6)
        a(f'ds_read_b128 {v(dst,4)}, {v(aV[b])} offset:{uu*10240 + (tt*2+f)*640}')
    kahome = lambda i, x: Ka[(i-1) % 2][x]
    vhome = lambda i, x, f: Vb[i % 2][2*x+f]
    def groupK(g):
        if g+1 >= NI: return
        for x in range(2): rdKa(kahome(g+1, x), 2*(g+1)+x)
        if (g+1) % 2 == 0: rdKb((g+1)//2)
    def groupV(g):
        if g >= NI: return
        a(f's_mov_b64 exec, {s(sVm,2)}')
        for x in range(2):
            for f in range(2): rdV(vhome(g, x, f), 2*g+x, f)
        a('s_mov_b64 exec, -1')
    def qk1(i, x, ka=None, c=None):
        d = S[i%2]+16*x
        a(f'v_mfma_f32_32x32x16_bf16 {v(d,16)}, {v(ka if ka else kahome(i,x),4)}, {v(Qa,4)}, {c or v(d,16)}')
    def r2b(i, c):
        kb = Kb[(i//2)%2] + 2*(i%2)
        a(f'v_mfma_f32_32x32x4_2b_bf16 {v(S[i%2],32)}, {v(kb,2)}, {v(Q2,2)}, {c}')
    def pv(i, x, f):
        a(f'v_smfmac_f32_32x32x32_bf16 {v(O,16)}, {v(vhome(i,x,f),4)}, {v(S[i%2]+16*x+8*f,8)}, {v(vIdx)}')
    a(f'ds_read_b64 {v(Q2,2)}, {v(vT1)} offset:1024')
    rdKb(0)
    a(f'ds_read_b128 {v(Qa,4)}, {v(vT0)}')
    rdKa(kahome(0,0), 0); rdKa(kahome(0,1), 1)
    a('s_waitcnt lgkmcnt(3)')
    r2b(0, '0')
    groupK(0); groupV(0)
    a('s_nop 8')
    a('s_waitcnt lgkmcnt(6)')
    qk1(0, 0); qk1(0, 1)
    if tspos == 0: tstores()
    if dumpq:
        a(f'''s_lshl_b32 {s(sT0)}, s2, 3
        s_add_u32 {s(sT0)}, {s(sT0)}, {s(sW)}
        s_mul_i32 {s(sT0)}, {s(sT0)}, 1536
        s_add_u32 {s(sT0)}, {s(sT0)}, {hex(WS_DBG)}
        buffer_store_dwordx4 {v(Qa,4)}, {v(vDma)}, {s(rWS,4)}, {s(sT0)} offen
        buffer_store_dwordx2 {v(Q2,2)}, {v(aKb[0])}, {s(rWS,4)}, {s(sT0)} offen offset:1024''')
    a('s_nop 10')
    s0 = S[0]
    a(f'v_max3_f32 {v(vT0)}, {v(s0)}, {v(s0+1)}, {v(s0+2)}')
    a(f'v_max3_f32 {v(vT1)}, {v(s0+3)}, {v(s0+4)}, {v(s0+5)}')
    for k, i in enumerate(range(6, 32, 2)):
        t = vT0 if k % 2 == 0 else vT1
        a(f'v_max3_f32 {v(t)}, {v(t)}, {v(s0+i)}, {v(s0+i+1)}')
    a(f'''v_max_f32 {v(vT0)}, {v(vT0)}, {v(vT1)}
    v_mov_b32 {v(vT1)}, {v(vT0)}
    s_nop 1
    v_permlane32_swap_b32 {v(vT0)}, {v(vT1)}
    s_nop 1
    v_max_f32 {v(vT0)}, {v(vT0)}, {v(vT1)}
    v_sub_f32 {v(Mn)}, {-moff}, {v(vT0)}
    v_sub_f32 {v(Mn+1)}, {-moff}, {v(vT0)}''')
    for i in range(2, 16 if rlast else 32, 2): a(f'v_pk_mov_b32 {v(Mn+i,2)}, {v(Mn,2)}, {v(Mn,2)}')
    for i in range(0, 32, 2): a(f'v_pk_add_f32 {v(s0+i,2)}, {v(s0+i,2)}, {v(Mn,2)}')
    if tspos == 1: tstores()
    stamp('loop')
    def need(g):
        hi = 0
        if g+1 < NI: hi = ((g+1)//2)*10240 + 5120
        if g < NI: hi = max(hi, (g//2)*10240 + 5120 + ((g%2)*4+4)*640)
        return hi
    if sync_plan is None: sync_plan = {3: 1, 10: 4}
    if dma_plan is None: dma_plan = {0: 1, 1: 2, 3: 3, 4: 4}
    if prio_y is None: prio_y = prio or {0: 3, 1: 2, 2: 1, 3: 3, 7: 2, 8: 1, 9: 0, 10: 3, 17: 2, 19: 1, 20: 0, 21: 3, 27: 2, 29: 1}
    if prio is None: prio = {0: 1, 1: 2, 2: 1, 3: 3, 6: 2, 8: 1, 9: 0, 10: 3, 16: 2, 19: 1, 20: 0, 21: 3, 27: 2, 30: 1}
    CF = [Bt, Bt+8]; Tf = Bt+16
    sops = []
    def s2_cf(k):
        if 'nos2ld' in dbg or 'nos2cf' in dbg: return
        a(f'buffer_load_dwordx4 {v(CF[k%2],4)}, {v(aR)}, {s(rRe,4)}, 0 offen offset:{32*k}')
        a(f'buffer_load_dwordx4 {v(CF[k%2]+4,4)}, {v(aR)}, {s(rIm,4)}, 0 offen offset:{32*k}')
        sops.extend([2*k, 2*k])
    def s2_ld(q):
        if 'nos2ld' in dbg: return
        for r in range(2):
            a(f's_add_u32 {s(sT0)}, {s(sPC)}, {(8*(q//2)+q%2+2*r)*5120}')
            for wh, ad in enumerate((aA, aB)):
                a(f'buffer_load_dwordx2 {v(Tf+8*(q%3)+4*wh+2*r,2)}, {v(ad)}, {s(rWS,4)}, {s(sT0)} offen sc1')
                sops.append(q)
    def s2_wait(q):
        last = max([k for k, o in enumerate(sops) if o == q] + [len(sops)-1 if 'nos2ld' in dbg else -1])
        a(f's_waitcnt vmcnt({len(sops)-1-last})')
        if q % 2 == 0:
            c = CF[(q//2)%2]
            a(f'v_swap_b32 {v(c+1)}, {v(c+4)}\nv_swap_b32 {v(c+3)}, {v(c+6)}')
    def s2_mm(q, wh):
        ac = (P2, Q2a)[wh]
        if 'nos2mm' not in dbg:
            a(f'v_mfma_f32_32x32x16_bf16 {v(ac,16)}, {v(Tf+8*(q%3)+4*wh,4)}, {v(CF[(q//2)%2]+4*(q%2),4)}, {"0" if q == 0 else v(ac,16)}')
        if wh == 1:
            if q % 2 == 1 and q//2+2 < 4: s2_cf(q//2+2)
            if q+3 < 8: s2_ld(q+3)
    def s2_out():
        oU, oW = aA, aB
        a(f'''v_lshrrev_b32 {v(vT2)}, 12, {v(aR)}
        v_and_b32 {v(vT3)}, 16, {v(aR)}
        s_mov_b32 {s(sT1)}, 2560
        s_lshl_b32 {s(sT0)}, {s(sEt)}, 6
        v_add_u32 {v(vT3)}, {s(sT0)}, {v(vT3)}
        v_sub_u32 {v(oW)}, 0x800, {v(vT2)}
        v_mad_u32_u24 {v(oW)}, {v(oW)}, {s(sT1)}, {v(vT3)}
        v_mad_u32_u24 {v(oU)}, {v(vT2)}, {s(sT1)}, {v(vT3)}
        s_cmp_eq_u32 {s(sSlot)}, 32
        s_cbranch_scc0 {L('s2rows')}
        v_cmp_eq_u32 vcc, 0x400, {v(vT2)}
        v_mov_b32 {v(oW)}, {hex(OOB)}
        s_nop 0
        v_cndmask_b32 {v(oU)}, {v(oW)}, {v(oU)}, vcc
{L('s2rows')}:
        s_cmp_ge_u32 {s(sEt)}, 10
        s_cbranch_scc0 {L('s2dir')}
        v_swap_b32 {v(oU)}, {v(oW)}
{L('s2dir')}:''')
        for i in range(0, 16, 2):
            a(f'''v_pk_add_f32 {v(Bt+16,2)}, {v(P2+i,2)}, {v(Q2a+i,2)} neg_lo:[0,1] neg_hi:[0,1]
            v_pk_add_f32 {v(Bt+18,2)}, {v(P2+i,2)}, {v(Q2a+i,2)}
            v_cvt_pk_bf16_f32 {v(Bt+i//2)}, {v(Bt+16)}, {v(Bt+17)}
            v_cvt_pk_bf16_f32 {v(Bt+8+i//2)}, {v(Bt+18)}, {v(Bt+19)}''')
    def s2_st(k):
        if 'nos2st' in dbg or 'nos2out' in dbg: return
        a(f'buffer_store_dwordx4 {v(Bt+4*k,4)}, {v(aA if k < 2 else aB)}, {s(rOut,4)}, 0 offen offset:{32*(k%2)} {s2st}')
    def gate(role):
        a('s_waitcnt vmcnt(0)'); count_vck()
        a(f"s_cbranch_vccz {L('tok'+role)}")
        count_spin('tp'+role, 1)
        a(f"""{L('tok'+role)}:
        s_lshl_b32 {s(sT0)}, {s(sPB)}, 12
        s_add_u32 {s(sT0)}, {s(sT0)}, {hex(WS_OF)}
        v_lshlrev_b32 {v(vSp)}, 9, {v(vLane)}
        s_mov_b64 exec, 0xff
        buffer_load_dword {v(vSp)}, {v(vSp)}, {s(rWS,4)}, {s(sT0)} offen sc1
        s_mov_b64 exec, -1""")
    def otouch():
        a(f"""v_lshlrev_b32 {v(vT0)}, 7, {v(vLane)}
        s_mov_b64 exec, 0xff
        buffer_load_dword v0, {v(vT0)}, {s(rWS,4)}, {s(sOa)} offen sc1
        s_mov_b64 exec, 3
        buffer_load_dword v0, {v(vT0)}, {s(rWS,4)}, {s(sOb)} offen sc1
        s_mov_b64 exec, 1
        buffer_load_dword v0, {v(vT0)}, {s(rWS,4)}, {s(sTag)} offen sc1
        s_mov_b64 exec, -1""")
    def samedie():
        a(f"""s_waitcnt vmcnt(0)
        v_and_b32 {v(vSp)}, 15, {v(vSp)}
        v_cmp_ne_u32 vcc, {s(sXcc)}, {v(vSp)}
        s_and_b32 {s(sFast)}, vcc_lo, 0xff""")
    def s2_fin():
        if 'nos2out' in dbg: return
        a(f"s_cmp_eq_u32 {s(sJob)}, 0\ns_cbranch_scc1 {L('s2skip')}")
        s2_out()
        a(f"{L('s2skip')}:")
    s2_plan = {(s2it+1, dpos): lambda: (s2_cf(0), s2_ld(0)), (s2it+2, dpos): lambda: (s2_ld(1), s2_cf(1), s2_ld(2))}
    for q in range(8):
        s2_plan[(s2it+4+q, s2pos[0])] = (lambda q=q: s2_wait(q))
        s2_plan[(s2it+4+q, s2pos[1])] = (lambda q=q: s2_mm(q, 0))
        s2_plan[(s2it+4+q, s2pos[2])] = (lambda q=q: s2_mm(q, 1))
    s2_plan[(s2it+12, dpos)] = s2_fin
    for k in range(4):
        key = (s2sts[k], 32)
        s2_plan[key] = (lambda k=k, prev=s2_plan.get(key): (prev() if prev else None, s2_st(k)))
        assert s2sts[k] >= s2it+12
    vSc = 78
    def remax():
        a(f"""v_frexp_exp_i32_f32 {v(vSc)}, {v(O+12)}
        v_sub_u32 {v(vSc)}, {int(24-moff)+1}, {v(vSc)}
        v_max_i32 {v(vSc)}, {hex(2**32-120)}, {v(vSc)}
        v_cvt_f32_i32 {v(vSc+1)}, {v(vSc)}
        v_ldexp_f32 {v(vSc)}, 1.0, {v(vSc)}""")
        for k in range(0, 16, 2): a(f'v_pk_add_f32 {v(Mn+k,2)}, {v(Mn+k,2)}, {v(vSc,2)} op_sel:[0,1] op_sel_hi:[1,1]')
    def rescale():
        for k in range(0, 14, 2): a(f'v_pk_mul_f32 {v(O+k,2)}, {v(O+k,2)}, {v(vSc,2)} op_sel_hi:[1,0]')
    def loop(role):
        old = role == 'o'
        pr = prio if old else prio_y
        g0 = ogate if old else s2it
        assert len({g0-glag, g0+1, pretouch, wo_vis if old else s2it+12}) == 4
        all_plan = {g0-glag: lambda: (count_vload(1), vops.append('t')), g0+1: lambda: gate(role), (wo_vis if old else s2it+12): samedie, pretouch: otouch}
        synced = [kvw*8192]; nsync = [0]; rounds = []; nwo = [0]; vops = []
        for i in range(NI):
            ev = {}
            def at(p, fn): ev.setdefault(p, []).append(fn)
            at(0, lambda: stamp(f'it{i}'))
            if i in pr: at(0, lambda: a(f's_setprio {pr[i]}'))
            at(0, lambda: a('s_waitcnt lgkmcnt(0)'))
            if i == wo_bar:
                assert i >= 21 and nsync[0] == 2
                if 'nob3' not in dbg: at(0, lambda: a('s_barrier'))
            if old and i == wo_bar-1:
                at(dpos, lambda: a(f'v_mov_b32 {v(vT0)}, 0\nv_mov_b32 {v(vT1)}, {s(sW)}\nv_lshlrev_b32 {v(vT1)}, 2, {v(vT1)}\nds_write_b32 {v(vT1)}, {v(vT0)}'))
            if old and i == wo_vis:
                assert nwo[0] == 5
                at(dpos, lambda: a(f's_waitcnt vmcnt(0)\nds_write_b32 {v(vT1)}, {v(vIdx)}'))
            def ldk():
                gn = i+1
                if gn in sync_plan:
                    r = sync_plan[gn]
                    stamp(f'sw{nsync[0]}'); a(f's_waitcnt vmcnt({vops[::-1].index(r) if cnt2 else 4*(len(rounds)-1-rounds.index(r))})'); stamp(f'sx{nsync[0]}')
                    if f'nob{nsync[0]+1}' not in dbg: a('s_barrier')
                    if nsync[0] == 0 and not old:
                        a(f"s_cmp_eq_u32 {s(sW)}, 7\ns_cbranch_scc0 {L('notf')}")
                        count_add(1)
                        a(f"{L('notf')}:")
                    synced[0] = (r+1)*32768; nsync[0] += 1
                assert need(gn) <= synced[0], (gn, need(gn), synced[0])
                groupK(gn)
            at(ldpos[0], ldk)
            at(ldpos[1], lambda: groupV(i+1))
            def dm():
                if i in dma_plan:
                    r = dma_plan[i]
                    assert r < 4 or nsync[0] >= 1
                    dma(r); rounds.append(r); vops.extend([r]*4)
                if i == pretouch: vops.extend('ttt')
                if old and i == wotouch:
                    vops.append('t')
                    a(f"""s_lshl2_add_u32 {s(sT0)}, {s(sI)}, {s(sW)}
                    s_mulk_i32 {s(sT0)}, 6400
                    v_min_u32 {v(vT0)}, 49, {v(vLane)}
                    v_lshlrev_b32 {v(vT0)}, 7, {v(vT0)}
                    buffer_load_dword v0, {v(vT0)}, {s(rWo,4)}, {s(sT0)} offen""")
                if old and i == outtouch:
                    a(f"""s_lshl2_add_u32 {s(sT0)}, {s(sPB)}, {s(sW)}
                    s_mul_i32 {s(sT0)}, {s(sT0)}, {16*2560}
                    s_mul_i32 {s(sT1)}, {s(sHG)}, 160
                    s_add_u32 {s(sT0)}, {s(sT0)}, {s(sT1)}
                    s_mov_b64 exec, 0xffff
                    buffer_load_dword v0, {v(vSt8)}, {s(rOut,4)}, {s(sT0)} offen offset:1280 sc1
                    buffer_load_dword v0, {v(vSt8)}, {s(rOut,4)}, {s(sT0)} offen offset:1436 sc1
                    s_mov_b64 exec, -1""")
                if old and i >= wo_bar and nwo[0] < 5: wodma(nwo[0]); nwo[0] += 1
                if i in all_plan: all_plan[i]()
            at(dpos, dm)
            if not old and 'nos2' not in dbg:
                for (it, p), fn in s2_plan.items():
                    if it == i: at(p, fn)
            if i > 0: at(pos['pvp'], lambda: pv(i-1, 1, 1))
            if i+1 < NI:
                at(pos['r'], lambda: r2b(i+1, v(S[(i+1)%2],32) if rlast else v(Mn,32)))
                for x in range(2): at(pos[f'q1{x}'], lambda x=x: qk1(i+1, x, c=v(Mn,16) if rlast else None))
            if i in upd: at(pos['pv01'], remax)
            pp = (pos['pv00'], pos['pv01'], pos['pv10'])
            if i-2 in upd:
                at(updpos[0], rescale); pp = updpos[1:]
            at(pp[0], lambda: pv(i, 0, 0)); at(pp[1], lambda: pv(i, 0, 1)); at(pp[2], lambda: pv(i, 1, 0))
            for e in range(33):
                for fn in ev.get(e, []): fn()
                if e < 32: a(f'v_exp_f32 {v(S[i%2]+e)}, {v(S[i%2]+e)}')
        assert rounds == [1, 2, 3, 4]
    a(f"s_cmp_ge_u32 {s(sW)}, 4\ns_cbranch_scc1 {L('young')}")
    loop('o')
    a(f"s_branch {L('lend')}\n{L('young')}:")
    loop('y')
    a(f"{L('lend')}:")
    a('s_nop 1')
    pv(NI-1, 1, 1)
    stamp('loopend')
    a(f'''s_or_b32 {s(sT0)}, {s(sXcc)}, 0x100
    v_mov_b32 {v(vSp)}, {s(sT0)}
    s_mov_b64 {s(sM,2)}, -1
    s_nop 8''')
    a(f"""{L('fin')}:
    v_rcp_f32 {v(vT2)}, {v(O+12)}
    s_nop 0""")
    pk = S[0]; nm = S[0]+8
    for i in range(0, 12, 2): a(f'v_pk_mul_f32 {v(nm+i,2)}, {v(O+i,2)}, {v(vT2,2)} op_sel_hi:[1,0]')
    for i in range(6): a(f'v_cvt_pk_bf16_f32 {v(pk+i)}, {v(nm+2*i)}, {v(nm+2*i+1)}')
    def both(lbl, fn, ff=''):
        if not fast: return fn('sc1')
        a(f"s_cmp_eq_u32 {s(sFast)}, 0\ns_cbranch_scc1 {L(lbl+'f')}")
        fn('sc1')
        a(f"s_branch {L(lbl+'j')}\n{L(lbl+'f')}:")
        fn(ff)
        a(f"{L(lbl+'j')}:")
    both('ost', lambda fl: a(f"""buffer_store_dwordx4 {v(pk,4)}, {v(vDma)}, {s(rWS,4)}, {s(sOa)} offen {fl}
    s_mov_b64 exec, {s(sLo,2)}
    buffer_store_dwordx2 {v(pk+4,2)}, {v(aKb[0])}, {s(rWS,4)}, {s(sOb)} offen {fl}
    s_mov_b64 exec, -1"""), ost)
    a(f'v_mul_f32 {v(vT0)}, {fhex(2.0**17)}, {v(vT2)}')
    a(f'v_pk_mul_f32 {v(vT2,2)}, {v(O,2)}, 0 op_sel_hi:[1,0]')
    a(f'v_max3_f32 {v(vT1)}, abs({v(O)}), abs({v(O+1)}), abs({v(O+2)})')
    for i in range(2, 14, 2): a(f'v_pk_fma_f32 {v(vT2,2)}, {v(O+i,2)}, 0, {v(vT2,2)} op_sel_hi:[1,0,1]')
    a(f'v_max3_f32 {v(vT1)}, {v(vT1)}, abs({v(O+3)}), abs({v(O+4)})')
    a(f'v_max3_f32 {v(vT1)}, {v(vT1)}, abs({v(O+5)}), abs({v(O+6)})')
    a(f'v_max3_f32 {v(vT1)}, {v(vT1)}, abs({v(O+7)}), abs({v(O+7)})')
    a(f'v_min_f32 {v(vT1)}, {v(vT1)}, {v(vT0)}')
    a(f"""v_add_f32 {v(vT2)}, {v(vT2)}, {v(vT3)}
    v_add_f32 {v(vT2)}, {v(vT2)}, {v(vT1)}
    v_cmp_nle_f32 vcc, 0x0c000000, {v(vT2)}          ; 2^-103
    s_and_b64 vcc, vcc, {s(sM,2)}
    {'s_nop 0' if dbg else 's_cbranch_vccnz ' + L('slow')}""")
    def flag(lbl):
        a('s_mov_b64 exec, 1\ns_waitcnt vmcnt(0)')
        both(lbl, lambda fl: a(f'buffer_store_dword {v(vSp)}, {v(vDma)}, {s(rWS,4)}, {s(sTag)} offen {fl}'))
        a('s_mov_b64 exec, -1')
        stamp('flag')
    a(f"""s_cmp_ge_u32 {s(sW)}, 4
    s_cbranch_scc0 {L('oproj')}""")
    flag('fl1')
    a(f"s_branch {L('done')}\n{L('oproj')}:")
    Of = 200
    acc = [180+4*m for m in range(5)]
    nbuf = npre
    Wf = [[20*b+4*m for m in range(5)] for b in range(nbuf)]
    assert 20*nbuf <= 180
    vP = 248
    a(f"""s_lshl_b32 {s(sT2)}, {s(sPB)}, 12
    s_add_u32 {s(sT2)}, {s(sT2)}, {hex(WS_OF)}
    s_lshr_b32 {s(sT1)}, {s(sW)}, 1
    s_lshl1_add_u32 {s(sA)}, {s(sPB)}, {s(sT1)}
    s_mul_i32 {s(sA)}, {s(sA)}, 40960
    s_add_u32 {s(sA)}, {s(sA)}, {hex(WS_O)}
    s_lshl2_add_u32 {s(sB)}, {s(sPB)}, {s(sW)}
    s_mul_i32 {s(sB)}, {s(sB)}, {16*2560}
    s_mul_i32 {s(sT1)}, {s(sHG)}, 160
    s_add_u32 {s(sB)}, {s(sB)}, {s(sT1)}
    s_add_u32 {s(sB)}, {s(sB)}, 1280
    v_mov_b32 {v(vP+4)}, 0
    s_mov_b32 {s(sCnt)}, 0x400000
{L('wov')}:
    ds_read_b128 {v(vP,4)}, {v(vP+4)}
    s_sub_u32 {s(sCnt)}, {s(sCnt)}, 1
    s_cbranch_scc1 {L('wovx')}
    s_waitcnt lgkmcnt(0)
    v_min3_u32 {v(vP)}, {v(vP)}, {v(vP+1)}, {v(vP+2)}
    v_min_u32 {v(vP)}, {v(vP)}, {v(vP+3)}
    v_cmp_eq_u32 vcc, 0, {v(vP)}
    s_cbranch_vccnz {L('wov')}
{L('wovx')}:""")
    def rdW(t):
        X, st = divmod(t, 10)
        out = []
        for m in range(5):
            for rd in range(2):
                if st < 8: ad, o = aWn[st//4], (st%4)*12800 + X*6400 + rd*1280 + 32*m
                else: ad, o = aWr, (st-8)*51200 + (2*X+rd)*3200 + 32*m
                out.append(f'ds_read_b64_tr_b16 {v(Wf[t%nbuf][m]+2*rd,2)}, {v(ad)} offset:{o}')
        return out
    for t in range(2, 2+wpre):
        for x in rdW(t): a(x)
    flag('fl0')
    pollld = lambda X: a(f'buffer_load_dword {v(vP)}, {v(vF)}, {s(rWS,4)}, {s(sT2)} offen offset:{256*X} {pfl}')
    pollck = lambda: a(f'v_cmp_gt_u32 vcc, 0x100, {v(vP)}')
    pollld(0)
    for t in [0, 1] + list(range(2+wpre, nbuf-1)):
        for x in rdW(t): a(x)
    ops = []
    def ldO(t):
        X, st = divmod(t, 10); d = Of + 4*(t % 10)
        if st < 8:
            a(f"""s_add_u32 {s(sT1)}, {s(sA)}, {st*5120}
            buffer_load_dwordx4 {v(d,4)}, {v(vO)}, {s(rWS,4)}, {s(sT1)} offen offset:{X*2048} {ofl}""")
            ops.append(t)
        else:
            a(f's_add_u32 {s(sT1)}, {s(sA)}, {(st-8)*20480+4096}')
            for rd in range(2):
                a(f'buffer_load_dwordx2 {v(d+2*rd,2)}, {v(vOb)}, {s(rWS,4)}, {s(sT1)} offen offset:{(2*X+rd)*256} {ofl}')
                ops.append(t)
    def step(t, load=True):
        if load and t + oahead < 20: ldO(t + oahead)
        if t == epoll: pollld(1); ops.append('p')
        nxt = t + nbuf - 1
        rd = rdW(nxt) if nxt < 20 else []
        younger = min(19, t + nbuf - 2) - t
        last = max(k for k, o in enumerate(ops) if o == t)
        a(f's_waitcnt vmcnt({len(ops)-1-last}) lgkmcnt({0 if t == 0 else min(15, 10*younger)})')
        stamp(f'st{t}')
        for m in range(5):
            c = '0' if t == 0 else v(acc[m],4)
            a(f'v_mfma_f32_16x16x32_bf16 {v(acc[m],4)}, {v(Wf[t%nbuf][m],4)}, {v(Of+4*(t%10),4)}, {c}')
            for x in rd[2*m:2*m+2]: a(x)
    assert epoll + oahead < 10
    a('s_waitcnt vmcnt(0)'); pollck()
    a(f"s_cbranch_vccz {L('op0x')}")
    spin('op0', lambda: pollld(0), pollck)
    stamp('poll0')
    for t in range(oahead): ldO(t)
    tg = 10 - oahead
    for t in range(tg): step(t)
    a(f"s_waitcnt vmcnt({len(ops) - 1 - ops.index('p')})"); pollck()
    a(f"s_cbranch_vccz {L('opB')}")
    keep = list(ops)
    for t in range(tg, 10):
        if t == 8: pollld(1); ops.append('p')
        step(t, load=False)
    a('s_waitcnt vmcnt(0)'); pollck()
    a(f"s_cbranch_vccz {L('op1x')}")
    spin('op1', lambda: pollld(1), pollck)
    stamp('poll1')
    for t in range(10, 10+oahead): ldO(t)
    a(f"s_branch {L('opJ')}\n{L('opB')}:")
    stamp('poll1')
    ops[:] = keep
    for t in range(tg, 10): step(t)
    a(f"{L('opJ')}:")
    for t in range(10, 20): step(t)
    stamp('oproj')
    a('s_nop 7')
    for m in range(5):
        for i in range(2): a(f'v_cvt_pk_bf16_f32 {v(16+2*m+i)}, {v(acc[m]+2*i)}, {v(acc[m]+2*i+1)}')
    if 'noout' in dbg: a(f"s_branch {L('done')}")
    a(f'buffer_store_dwordx2 {v(24,2)}, {v(vSt8)}, {s(rOut,4)}, {s(sB)} offen offset:128 {outst}')
    for pr in range(2):
        a(f'''v_permlane16_swap_b32 {v(16+4*pr)}, {v(18+4*pr)}
        v_permlane16_swap_b32 {v(17+4*pr)}, {v(19+4*pr)}''')
    for pr in range(2):
        a(f'buffer_store_dwordx4 {v(16+4*pr,4)}, {v(vSt)}, {s(rOut,4)}, {s(sB)} offen offset:{64*pr} {outst}')
    if diag:
        a(f"s_branch {L('done2')}\n{L('done')}:")
        stamp('poll0'); stamp('phA'); stamp('poll1'); stamp('oproj')
        a(f"{L('done2')}:")
        diag_out()
    else:
        a(f"{L('done')}:")
    a(f"{L('end')}:")
    a('s_endpgm')
    a(f"{L('slow')}:")
    a(f'v_mov_b32 {v(Mn)}, 0xff800000\ns_mov_b64 {s(sM,2)}, 0')
    for ps in range(2):
        a(f'''s_mov_b32 {s(sCnt)}, 0
{L('slow%d' % ps)}:''')
        for hf in range(2):
            a(f'''s_add_u32 {s(sT1)}, {s(sCnt)}, {4096}
            buffer_load_dwordx2 {v(Kb[0],2)}, {v(aKb[0])}, {s(rWS,4)}, {s(sT1)} offen offset:{hf*512} sc1''')
            for x in range(2):
                a(f'buffer_load_dwordx4 {v(Ka[0][x],4)}, {v(vDma)}, {s(rWS,4)}, {s(sCnt)} offen offset:{(2*hf+x)*1024} sc1')
            if ps == 1:
                a(f'''s_add_u32 {s(sT1)}, {s(sCnt)}, {hf*2560}
                s_mov_b64 exec, {s(sVm,2)}''')
                for f in range(4):
                    a(f'buffer_load_dwordx4 {v(Vb[0][f],4)}, {v(aV[0])}, {s(rWS,4)}, {s(sT1)} offen offset:{f*640} sc1')
                a('s_mov_b64 exec, -1')
            a(f'''s_waitcnt vmcnt(0)
            v_mfma_f32_32x32x4_2b_bf16 {v(s0,32)}, {v(Kb[0],2)}, {v(Q2,2)}, 0
            s_nop 15
            s_nop 3''')
            for x in range(2): qk1(0, x, Ka[0][x])
            a('s_nop 15')
            if ps == 0:
                for i in range(0, 32, 2): a(f'v_max3_f32 {v(Mn)}, {v(Mn)}, {v(s0+i)}, {v(s0+i+1)}')
            else:
                for i in range(32): a(f'v_sub_f32 {v(s0+i)}, {v(s0+i)}, {v(Mn)}')
                for i in range(32): a(f'v_exp_f32 {v(s0+i)}, {v(s0+i)}')
                a('s_nop 1')
                for x in range(2):
                    for f in range(2): pv(0, x, f)
                a('s_nop 7')
        a(f'''s_add_u32 {s(sCnt)}, {s(sCnt)}, 10240
        s_cmp_lt_u32 {s(sCnt)}, {KV_BYTES}
        s_cbranch_scc1 {L('slow%d' % ps)}''')
        if ps == 0:
            a(f'''v_mov_b32 {v(vT1)}, {v(Mn)}
            s_nop 1
            v_permlane32_swap_b32 {v(Mn)}, {v(vT1)}
            s_nop 1
            v_max_f32 {v(Mn)}, {v(Mn)}, {v(vT1)}''')
            for i in range(16): a(f'v_mov_b32 {v(O+i)}, 0')
    a(f'''s_nop 15
    s_branch {L('fin')}
{L('codeend')}:''')
    return a.text(), kernel_desc(name, 256), 256
```

```python
from asmlib import *
from layout import *
def gen_spin(A, B, mult=20, name='spin_kernel', waves=range(8), rec=32, base=WS_DIAG):
    a = Asm()
    a(kernel_head(name))
    a(f'''s_cmp_ge_u32 s2, 1
    s_cbranch_scc1 L_spin_end
    s_load_dwordx2 s[4:5], s[0:1], 96
    v_mul_u32_u24 v1, {8*rec}, v0
    v_mov_b32 v2, 0
    v_mov_b32 v3, {'-1' if A[2]=='min' else '0'}
    v_mov_b32 v4, {'-1' if B[2]=='min' else '0'}
    ds_write_b32 v2, v3
    ds_write_b32 v2, v4 offset:4
    s_waitcnt lgkmcnt(0)''')
    srd(a, 8, 4, 0x80000, base)
    a('s_barrier')
    for n, (k, st, op) in enumerate((A, B)):
        a(f's_mov_b32 s12, {k*0x10000}')
        for w in waves:
            a(f'buffer_load_dword v{10+8*n+w}, v1, s[8:11], s12 offen offset:{w*rec+st*4}')
    a('s_waitcnt vmcnt(0)')
    for n, (k, st, op) in enumerate((A, B)):
        for w in waves:
            a(f'ds_{op}_u32 v2, v{10+8*n+w} offset:{4*n}')
    a(f'''s_waitcnt lgkmcnt(0)
    s_barrier
    ds_read_b64 v[4:5], v2
    s_waitcnt lgkmcnt(0)
    v_sub_u32 v4, v5, v4
    s_nop 1
    v_readfirstlane_b32 s14, v4
    s_memrealtime s[16:17]
    s_min_u32 s14, s14, 10000
    s_mul_i32 s14, s14, {mult}
    s_waitcnt lgkmcnt(0)
L_spin_loop:
    s_memrealtime s[18:19]
    s_waitcnt lgkmcnt(0)
    s_sub_u32 s20, s18, s16
    s_cmp_lt_u32 s20, s14
    s_cbranch_scc1 L_spin_loop
L_spin_end:
    s_endpgm''')
    return (name, a.text(), kernel_desc(name, 32), 1, 256, 64)
```

```python
import math
WS_KV = 0x0;  KV_BYTES = 163840
WS_NONCE = 0x30000
WS_KVF = 0x34000
WS_TF = 0x38000
WS_OF = 0x40000
WS_O = 0x100000; O_BYTES = 64*40960
WS_T = 0x400000; T_BYTES = 17*163840
WS_DIAG = 0x700000
WS_DBG = 0x800000
WS_SIZE = 0xC00000
X_BYTES = 2048*1280; W_BYTES = 640*1280; WKV_BYTES = 640*40; SEQ_BYTES = 2048*4096; OUT_BYTES = 2048*2560
QSCALE = math.log2(math.e) / math.sqrt(20.0)
M_OFF = 100.0
VSCALE = 2.0**24
ONES = 0x4b804b80
WKV = 0; XKV = 32768
RING = XKV + 20480; SLOT = 24576; NSLOT = 4; R_XB = 0; R_WQ = 6144; R_XA = 16384
QX = RING + NSLOT*SLOT
assert QX + 10240 <= 163840
```

```python
import sys
sys.path.insert(0, 'gen')
import fz, importlib
NAME = 'concat_heads__spectral_fnet__grouped_kv_mqa__prompt'
def header():
    ref = open('header.txt').read().split('\n')
    return [l for l in ref if l.startswith(';') and '@launch' not in l]
def write(path, aslist=False, extra=(), mod='fz', **kw):
    t, d, nv = importlib.import_module(mod).gen(NAME + '_kernel', **kw)
    ln = [f'; @launch kernel={NAME}_kernel grid=(256,1,1) block=(512,1,1) lds=163840'] if aslist else ['; @launch grid=(256,1,1) block=(512,1,1) lds=163840']
    for nm, tt, dd, g, bb, lds in extra:
        ln.append(f'; @launch kernel={nm} grid=({g},1,1) block=({bb},1,1) lds={lds}'); t += tt; d += dd
    out = header() + ln + [ '.amdgcn_target "amdgcn-amd-amdhsa--gfx950"\n.text', t, '.section .rodata,"a"', d]
    open(path, 'w').write('\n'.join(out))
if __name__ == '__main__':
    write(f'cdna_kernels/{NAME}.s')

def dwrite(path, **kw):
    import spin, zl
    write(path, aslist=True, diag=True, view=(), extra=[spin.gen_spin((0,0,'min'), (0,7,'max'), rec=64, base=zl.WS_DIAG, waves=range(4))], **kw)
```
